```python
import torch

def _softmax(x, axis=-1):
    return torch.softmax(x, dim=axis)
def _gelu(x):
    return torch.nn.functional.gelu(x, approximate="tanh")
def _silu(x):
    return torch.nn.functional.silu(x)
def _sigmoid(x):
    return torch.sigmoid(x)
def _layernorm(x, axis=-1, eps=1e-5):
    m = x.mean(dim=axis, keepdim=True)
    v = x.var(dim=axis, keepdim=True, unbiased=False)
    return (x - m) / torch.sqrt(v + eps)
def _scatter_add(tgt, idx, src, axis=0):
    return tgt.clone().index_add_(axis, idx, src)
def _segment_sum(src, seg, n):
    out = torch.zeros((n,) + src.shape[1:], dtype=src.dtype)
    return out.index_add_(0, seg, src)
def _pad(x, pw):
    flat = tuple(v for pair in reversed(pw) for v in pair)
    return torch.nn.functional.pad(x, flat)

kernel_name = 'interleave_layers__mha_block_cached__dense_activation_gelu__decode'

def setup_inputs():

    _w = (lambda a: (lambda t: t.to(torch.bfloat16) if t.is_floating_point() else t)(torch.as_tensor(a)))
    def _A_setup():
        B, Sq, D = 2, 1, 512
        H, Sk, Dh = 32, 8192, 128
        return {
            "x": _w((lambda *s: torch.randn(*s, dtype=torch.bfloat16) * 0.1)(B, Sq, D)),
            "k_cache": _w((lambda *s: torch.randn(*s, dtype=torch.bfloat16) * 0.8)(B, H, Sk, Dh)),
            "v_cache": _w((lambda *s: torch.randn(*s, dtype=torch.bfloat16) * 3.2)(B, H, Sk, Dh)),
            "wq": _w((lambda *s: torch.randn(*s, dtype=torch.bfloat16) * 0.8)(D, H * Dh) * (D ** -0.5)),
            "wo": _w((lambda *s: torch.randn(*s, dtype=torch.bfloat16) * 3.2)(H * Dh, D) * ((H * Dh) ** -0.5)),
        }
    _A_in = _A_setup()

    def _B_setup():
        B, S, D, F = 2, 1, 512, 1792
        return {
            "x": _w((lambda *s: torch.randn(*s, dtype=torch.bfloat16) * 0.1)(B, S, D)),
            "w1": _w((lambda *s: torch.randn(*s, dtype=torch.bfloat16) * 1.6)(D, F) * (D ** -0.5)),
            "b1": _w((lambda *s: torch.randn(*s, dtype=torch.bfloat16) * 1.6)(F) * 0.01),
            "w2": _w((lambda *s: torch.randn(*s, dtype=torch.bfloat16) * 0.4)(F, D) * (F ** -0.5)),
            "b2": _w((lambda *s: torch.randn(*s, dtype=torch.bfloat16) * 0.4)(D) * 0.01),
        }
    _B_in = _B_setup()

    return {
        "A_x": _A_in["x"],
        "A_k_cache": _A_in["k_cache"],
        "A_v_cache": _A_in["v_cache"],
        "A_wq": _A_in["wq"],
        "A_wo": _A_in["wo"],
        "B_x": _B_in["x"],
        "B_w1": _B_in["w1"],
        "B_b1": _B_in["b1"],
        "B_w2": _B_in["w2"],
        "B_b2": _B_in["b2"],
    }

def reference(A_x, A_k_cache, A_v_cache, A_wq, A_wo, B_x, B_w1, B_b1, B_w2, B_b2):
    def _A_ref(x, k_cache, v_cache, wq, wo):
        B, Sq, D = x.shape
        H, Dh = 32, 128
        q = (lambda x, *d: x.permute(*d))((x @ wq).reshape(B, Sq, H, Dh), 0, 2, 1, 3)
        scores = torch.einsum("bhqd,bhkd->bhqk", q, k_cache) * (Dh ** -0.5)
        p = _softmax(scores, axis=-1)
        o = torch.einsum("bhqk,bhkd->bhqd", p, v_cache)
        return (lambda x, *d: x.permute(*d))(o, 0, 2, 1, 3).reshape(B, Sq, H * Dh) @ wo

    def _B_ref(x, w1, b1, w2, b2):
        h = torch.einsum("bsd,df->bsf", x, w1) + b1
        h = _gelu(h)
        return torch.einsum("bsf,fd->bsd", h, w2) + b2

    x = A_x
    x = x + _A_ref(_layernorm(x, axis=-1), A_k_cache, A_v_cache, A_wq, A_wo)
    x = x + _B_ref(_layernorm(x, axis=-1), B_w1, B_b1, B_w2, B_b2)
    x = x + _A_ref(_layernorm(x, axis=-1), A_k_cache, A_v_cache, A_wq, A_wo)
    x = x + _B_ref(_layernorm(x, axis=-1), B_w1, B_b1, B_w2, B_b2)
    return x
```

```python
import re

TRANS = ("v_exp_f32", "v_log_f32", "v_rcp_f32", "v_rsq_f32", "v_sqrt_f32", "v_sin_f32", "v_cos_f32",
         "v_rcp_iflag_f32")
DPP_KEYS = ("row_shr", "row_shl", "row_ror", "quad_perm", "row_bcast", "row_newbcast", "row_mirror",
            "row_half_mirror", "wave_shr", "wave_shl", "wave_ror", "wave_rol")

def regs_of(tok):
    tok = tok.strip()
    if tok.startswith("-"): tok = tok[1:]
    if tok.startswith("|") and tok.endswith("|"): tok = tok[1:-1]
    m = re.fullmatch(r"([vas])(\d+)", tok)
    if m: return {(m.group(1), int(m.group(2)))}
    m = re.fullmatch(r"([vas])\[(\d+):(\d+)\]", tok)
    if m: return {(m.group(1), i) for i in range(int(m.group(2)), int(m.group(3)) + 1)}
    if tok == "vcc": return {("s", "vcc_lo"), ("s", "vcc_hi")}
    if tok in ("vcc_lo", "vcc_hi"): return {("s", tok)}
    if tok == "m0": return {("s", "m0")}
    if tok == "exec": return {("s", "exec_lo"), ("s", "exec_hi")}
    if tok in ("exec_lo", "exec_hi"): return {("s", tok)}
    return set()

def isv(r): return r[0] in ("v", "a")

class Ins:
    __slots__ = ("text", "op", "kind", "vd", "vs", "sd", "ss", "A", "B", "C", "D", "dpp", "trans", "perm",
                 "rdlane", "storewide", "lds_dma", "nopn", "cfirst")
    def __init__(self, text):
        self.text = text
        t = text.split(";")[0].strip()
        parts = t.split(None, 1)
        self.op = op = parts[0]
        rest = parts[1] if len(parts) > 1 else ""
        ops = [o.strip() for o in rest.split(",")] if rest else []
        mods = ""
        if ops:
            last = ops[-1].split(None, 1)
            ops[-1] = last[0] if last else ""
            mods = last[1] if len(last) > 1 else ""
        if "quad_perm" in rest:
            i = rest.index("quad_perm")
            head = rest[:i].strip()
            ops = [o.strip() for o in head.split(",")]
            last = ops[-1].split(None, 1); ops[-1] = last[0]
            mods = rest[i:]
        self.vd = set(); self.vs = set(); self.sd = set(); self.ss = set()
        self.A = self.B = self.C = self.D = set()
        self.dpp = any(k in rest for k in DPP_KEYS)
        self.trans = op.replace("_e32", "").replace("_e64", "") in TRANS
        self.perm = op.startswith("v_permlane")
        self.rdlane = op.startswith("v_readlane") or op.startswith("v_readfirstlane")
        self.storewide = False; self.lds_dma = False; self.nopn = 0; self.cfirst = None
        R = [regs_of(o) for o in ops]
        def add_src(rs):
            for r in rs:
                (self.vs if isv(r) else self.ss).add(r)
        def add_dst(rs):
            for r in rs:
                (self.vd if isv(r) else self.sd).add(r)
        if op == "s_nop":
            self.kind = "nop"; self.nopn = int(ops[0], 0) + 1
        elif op.startswith("v_mfma"):
            self.kind = "mfma"
            self.D = R[0]; self.A = R[1]; self.B = R[2]; self.C = R[3]
            self.vd = set(R[0]); self.vs = R[1] | R[2] | R[3]
        elif op.startswith("v_"):
            self.kind = "valu"
            if self.perm:
                add_dst(R[0]); add_dst(R[1]); add_src(R[0]); add_src(R[1])
            else:
                add_dst(R[0])
                for r in R[1:]: add_src(r)
                if op.startswith("v_cndmask") and len(ops) == 3: add_src(regs_of("vcc"))
                if op.startswith("v_fmac") or op.startswith("v_mac") or op.startswith("v_dot2c") or op.startswith("v_pk_fmac"):
                    add_src(R[0])
                if self.dpp or op.startswith("v_writelane"): add_src(R[0])
                if op.startswith("v_add_co") or op.startswith("v_sub_co") or op.startswith("v_addc") :
                    pass
        elif op.startswith("ds_"):
            self.kind = "ds"
            if op.startswith("ds_read") or "_rtn" in op or op.startswith("ds_bpermute") or op.startswith("ds_swizzle"):
                add_dst(R[0])
                for r in R[1:]: add_src(r)
            else:
                for r in R: add_src(r)
        elif op.startswith("buffer_") or op.startswith("global_"):
            self.kind = "vmem"
            ml = (" " + mods + " ")
            if op.startswith("buffer_load") and " lds " in ml:
                self.lds_dma = True
                for r in R: add_src(r)
                add_src(regs_of("m0"))
            elif op.startswith("buffer_load") or op.startswith("global_load"):
                add_dst(R[0])
                for r in R[1:]: add_src(r)
            elif "atomic" in op:
                for r in R: add_src(r)
                if " sc0 " in ml: add_dst(R[0] if op.startswith("buffer") else R[0])
            else:
                for r in R: add_src(r)
                if "x4" in op or "x3" in op:
                    self.storewide = R[0] if op.startswith("buffer") else R[1]
        elif op.startswith("s_"):
            self.kind = "salu"
            if op.startswith(("s_cmp", "s_cbranch", "s_branch", "s_waitcnt", "s_barrier", "s_endpgm", "s_setprio", "s_sleep", "s_bitcmp")):
                for r in R: add_src(r)
            else:
                if R: add_dst(R[0])
                for r in R[1:]: add_src(r)
                if "saveexec" in op: add_dst(regs_of("exec"))
        else:
            raise ValueError("unknown instr: " + text)

def need(P, C):
    n = 0
    if P.kind == "valu":
        if P.vd:
            if C.kind == "mfma" and P.vd & C.vs: n = max(n, 2)
            if C.kind == "valu":
                if (C.dpp or C.perm) and P.vd & C.vs: n = max(n, 2)
                if C.rdlane and P.vd & C.vs: n = max(n, 1)
                if P.trans and P.vd & (C.vs | (C.vd if False else set())): n = max(n, 1)
            if P.trans and C.kind in ("ds", "vmem") and P.vd & C.vs: n = max(n, 1)
        if P.sd:
            ov = P.sd & C.ss
            if ov:
                if C.kind == "valu": n = max(n, 4 if (C.op.startswith("v_readlane") or C.op.startswith("v_writelane")) else 2)
                if C.kind == "mfma": n = max(n, 2)
                if C.kind == "vmem": n = max(n, 5)
    elif P.kind == "mfma":
        if C.kind == "mfma":
            if P.D & C.C:
                n = max(n, 0 if P.D == C.C else 6)
            if P.D & (C.A | C.B): n = max(n, 8)
        elif C.kind in ("valu", "ds", "vmem"):
            if P.D & (C.vs | C.vd): n = max(n, 8)
            if C.kind == "valu" and P.C & C.vd: n = max(n, 3)
    elif P.kind == "salu":
        if ("s", "m0") in P.sd and C.lds_dma: n = max(n, 1)
    elif P.kind == "vmem":
        if P.storewide:
            if P.storewide & C.vd: n = max(n, 2 if C.kind == "valu" else 1)
    return n

def worst(P):
    if P.kind == "mfma": return 8
    if P.kind == "valu":
        n = 2 if P.vd else 0
        real = {r for r in P.sd if r[1] not in ("vcc_lo", "vcc_hi")}
        if real: n = max(n, 5)
        elif P.sd: n = max(n, 2)
        return n
    if P.kind == "salu" and ("s", "m0") in P.sd: return 1
    if P.kind == "vmem" and P.storewide: return 2
    return 0

class Asm:
    def __init__(self):
        self.out = []
        self.hist = []
        self.pos = 0
        self.nnop = 0
        self._lab = 0
    def raw(self, text):
        self.out.append(text)
    def comment(self, text):
        self.out.append("; " + text)
    def _nop(self, n):
        while n > 0:
            k = min(n, 16)
            self.out.append(f"s_nop {k-1}")
            self.pos += k; n -= k; self.nnop += 1
    def flush(self):
        n = 0
        for (p, P) in self.hist:
            n = max(n, worst(P) - (self.pos - p - 1))
        self._nop(n)
        self.hist = []
    def label(self, name):
        self.flush()
        self.out.append(name + ":")
    def newlabel(self, stem="L"):
        self._lab += 1
        return f"{stem}_{self._lab}"
    def __call__(self, text):
        for line in text.split("\n"):
            line = line.strip()
            if not line: continue
            if line.startswith(";"):
                self.out.append(line); continue
            if line.endswith(":"):
                self.label(line[:-1]); continue
            I = Ins(line)
            if I.op.startswith("s_cbranch") or I.op in ("s_branch", "s_endpgm", "s_setpc_b64", "s_swappc_b64"):
                if I.op != "s_endpgm": self.flush()
                self.out.append(line); self.pos += 1
                continue
            n = 0
            for (p, P) in self.hist:
                n = max(n, need(P, I) - (self.pos - p - 1))
            if n > 0: self._nop(n)
            self.out.append(line)
            if I.kind == "nop":
                self.pos += I.nopn
            else:
                self.hist.append((self.pos, I))
                self.pos += 1
            self.hist = [(p, P) for (p, P) in self.hist if self.pos - p <= 10]
    def text(self):
        return "\n".join(self.out) + "\n"

def vr(b, n=1, f="v"):
    return f"{f}{b}" if n == 1 else f"{f}[{b}:{b+n-1}]"
def ar(b, n=1): return vr(b, n, "a")
def sr(b, n=1): return vr(b, n, "s")
```

```python
import struct, math
from asmlib import *

def f2h(x):
    return "0x%08x" % struct.unpack("<I", struct.pack("<f", x))[0]

NAME = "interleave_layers__mha_block_cached__dense_activation_gelu__decode"
PH = 0x30000
WS_Q    = 0x0
WS_PART = 0x2000
PART_REC = 640
WS_Y    = 0x2A000
WS_H    = 0x2E000
WS_X2   = 0x2F000
WS_CLR  = 4*PH
assert WS_CLR == 128*6*1024
WS_SIZE = 5*PH
SM = 147456
WREG = 36864
QSCALE = (128 ** -0.5) * math.log2(math.e)
POLL_BUDGET = 200000

S_WG = 2; S_WAVE = 3
SRD_WS = 4; SRD_K = 8; SRD_V = 12
S_MASK = 16
SRD_DBG = 44
SRD_WQ = 48; SRD_WO = 52; SRD_W1 = 56; SRD_W2 = 60; SRD_X = 64; SRD_B1 = 68; SRD_B2 = 72; SRD_OUT = 76
S_BUD = 81

def srd(b): return f"s[{b}:{b+3}]"

class Q:
    def __init__(self, a, name, cap):
        self.a = a; self.name = name; self.cap = cap; self.q = []
    def issue(self, tag): self.q.append(tag)
    def wait(self, tag):
        if tag not in self.q: return
        i = len(self.q) - 1 - self.q[::-1].index(tag)
        n = len(self.q) - 1 - i
        self.a(f"s_waitcnt {self.name}({min(n, self.cap)})")
        keep = min(n, self.cap)
        self.q = self.q[len(self.q) - keep:] if keep else []
    def waitall(self):
        self.a(f"s_waitcnt {self.name}(0)"); self.q = []

def max3_chain(a, regs, dst, op="v_max3_u32", op2="v_max_u32"):
    regs = list(regs)
    if len(regs) == 1:
        a(f"v_mov_b32 {dst}, {regs[0]}"); return
    if len(regs) == 2:
        a(f"{op2} {dst}, {regs[0]}, {regs[1]}"); return
    a(f"{op} {dst}, {regs[0]}, {regs[1]}, {regs[2]}")
    i = 3
    while i < len(regs):
        if i + 1 < len(regs):
            a(f"{op} {dst}, {dst}, {regs[i]}, {regs[i+1]}"); i += 2
        else:
            a(f"{op2} {dst}, {dst}, {regs[i]}"); i += 1

def poll(a, emit_loads, regs, vt, waitcnt="vmcnt(0)"):
    L = a.newlabel("Lpoll"); D = a.newlabel("Lpdone")
    a.label(L)
    emit_loads()
    a(f"s_waitcnt {waitcnt}")
    if len(regs) == 1:
        a(f"v_cmp_eq_u32 vcc, -1, {regs[0]}")
    else:
        h = (len(regs) + 1) // 2
        if len(regs) >= 8:
            max3_chain(a, regs[:h], vt[0]); max3_chain(a, regs[h:] , vt[1])
            a(f"v_max_u32 {vt[0]}, {vt[0]}, {vt[1]}")
        else:
            max3_chain(a, regs, vt[0])
        a(f"v_cmp_eq_u32 vcc, -1, {vt[0]}")
    a(f"s_cbranch_vccz {D}")
    a(f"s_sub_u32 s{S_BUD}, s{S_BUD}, 1")
    a(f"s_cbranch_scc0 {L}")
    a(f"s_mov_b32 s{S_BUD}, 0")
    a.label(D)

def build_srd(a, dst, ptr, nbytes):
    a(f"s_mov_b32 s{dst}, s{ptr}\ns_mov_b32 s{dst+1}, s{ptr+1}\ns_mov_b32 s{dst+2}, {hex(nbytes)}\ns_mov_b32 s{dst+3}, 0x20000")

def set_exec(a, val):
    lo = val & 0xffffffff; hi = val >> 32
    if val == (1 << 64) - 1:
        a("s_mov_b64 exec, -1")
    else:
        a(f"s_mov_b32 exec_lo, {hex(lo)}\ns_mov_b32 exec_hi, {hex(hi)}")
EX_ALL = (1 << 64) - 1
EX_N0 = 0x0001000100010001
EX_NLT8 = 0x00FF00FF00FF00FF

class BlkRegs:
    pass

def emit_lds_addrs(a, R, vlane, region_sreg, t0, t1):
    a(f"v_and_b32 {t0}, 15, {vlane}")
    a(f"v_and_b32 {t1}, 7, {vlane}\nv_lshlrev_b32 {t1}, 1, {t1}")
    a(f"v_lshrrev_b32 v{R.ka[1]}, 4, {vlane}")
    a(f"v_xor_b32 {t1}, {t1}, v{R.ka[1]}\nv_lshlrev_b32 {t1}, 4, {t1}")
    a(f"v_lshlrev_b32 {t0}, 8, {t0}\nv_add_u32 {t0}, {t0}, {t1}")
    a(f"v_add_u32 v{R.ka[0]}, {region_sreg}, {t0}")
    for s in range(1, 4):
        a(f"v_xor_b32 v{R.ka[s]}, {s<<6}, v{R.ka[0]}")
    a(f"v_lshrrev_b32 {t0}, 2, {vlane}")
    a(f"v_and_b32 {t1}, 7, {t0}\nv_lshlrev_b32 {t1}, 1, {t1}")
    a(f"v_lshlrev_b32 {t0}, 8, {t0}")
    a(f"v_bfe_u32 v{R.va[1]}, {vlane}, 1, 1")
    a(f"v_xor_b32 {t1}, {t1}, v{R.va[1]}\nv_lshlrev_b32 {t1}, 4, {t1}")
    a(f"v_add_u32 {t0}, {t0}, {t1}")
    a(f"v_and_b32 {t1}, 1, {vlane}\nv_lshlrev_b32 {t1}, 3, {t1}\nv_add_u32 {t0}, {t0}, {t1}")
    a(f"v_add_u32 v{R.va[0]}, {region_sreg}, {t0}")
    for d in range(1, 8):
        a(f"v_xor_b32 v{R.va[d]}, {d<<5}, v{R.va[0]}")

def emit_dma_voff(a, vde, vdo, vlane, t0, t1):
    a(f"v_lshrrev_b32 {t0}, 4, {vlane}\nv_lshlrev_b32 {t1}, 1, {t0}")
    a(f"v_and_b32 {vde}, 15, {vlane}\nv_xor_b32 {vde}, {vde}, {t1}\nv_lshlrev_b32 {vde}, 4, {vde}")
    a(f"v_lshlrev_b32 {t0}, 8, {t0}\nv_add_u32 {vde}, {vde}, {t0}")
    a(f"v_xor_b32 {vdo}, 0x80, {vde}")

def dma_tile(a, srdn, soff, m0val, vde, vdo, pol="nt"):
    a(f"s_mov_b32 m0, {m0val}")
    for t in range(4):
        a(f"buffer_load_dwordx4 {vde if t % 2 == 0 else vdo}, {srd(srdn)}, {soff} offen offset:{t*1024} {pol} lds")

def emit_masks(a):
    for d in range(8):
        m = EX_N0 << d
        a(f"s_mov_b32 s{S_MASK+2*d}, {hex(m & 0xffffffff)}\ns_mov_b32 s{S_MASK+2*d+1}, {hex(m >> 32)}")

def emit_block(a, R, kt, vt, after_k=None, before_v=None, after_v=None):
    lq = Q(a, "lgkmcnt", 15)
    for T in range(2):
        for s in range(4):
            r = R.T + (T*4 + s)*4
            a(f"ds_read_b128 {vr(r,4)}, v{R.ka[s]} offset:{kt[T]}"); lq.issue(("k", T, s))
    for T in range(2):
        for s in range(4):
            r = R.T + (T*4 + s)*4
            lq.wait(("k", T, s))
            C = "0" if s == 0 else vr(R.S + 4*T, 4)
            a(f"v_mfma_f32_16x16x32_bf16 {vr(R.S+4*T,4)}, {vr(r,4)}, {vr(R.q+4*s,4)}, {C}")
    if after_k: after_k()
    if before_v: before_v()
    for d in range(8):
        r = R.T + 4*d
        a(f"ds_read_b64_tr_b16 {vr(r,2)}, v{R.va[d]} offset:{vt[0]}"); lq.issue(("v", d, 0))
        a(f"ds_read_b64_tr_b16 {vr(r+2,2)}, v{R.va[d]} offset:{vt[1]}"); lq.issue(("v", d, 1))
    S = R.S; t = R.t
    a(f"v_max3_f32 v{t}, v{S}, v{S+1}, v{S+2}")
    a(f"v_max3_f32 v{t+1}, v{S+4}, v{S+5}, v{S+6}")
    a(f"v_max3_f32 v{t}, v{t}, v{S+3}, v{S+7}")
    a(f"v_max3_f32 v{t}, v{t}, v{t+1}, v{R.m}")
    for sw in ("v_permlane16_swap_b32", "v_permlane32_swap_b32"):
        a(f"v_mov_b32 v{t+1}, v{t}")
        a(f"{sw} v{t}, v{t+1}")
        a(f"v_max_f32 v{t}, v{t}, v{t+1}")
    a(f"v_sub_f32 v{t+1}, v{R.m}, v{t}")
    a(f"v_exp_f32 v{t+1}, v{t+1}")
    a(f"v_mov_b32 v{R.m}, v{t}")
    for k in range(8):
        a(f"v_sub_f32 v{S+k}, v{S+k}, v{t}")
    for k in range(8):
        a(f"v_exp_f32 v{S+k}, v{S+k}")
    a(f"v_mul_f32 v{R.l}, v{R.l}, v{t+1}")
    for k in range(4):
        a(f"v_mul_f32 v{R.acc+k}, v{R.acc+k}, v{t+1}")
    a(f"v_add_f32 v{t+2}, v{S}, v{S+1}\nv_add_f32 v{t+3}, v{S+2}, v{S+3}")
    a(f"v_add_f32 v{t+2}, v{t+2}, v{S+4}\nv_add_f32 v{t+3}, v{t+3}, v{S+5}")
    a(f"v_add_f32 v{t+2}, v{t+2}, v{S+6}\nv_add_f32 v{t+3}, v{t+3}, v{S+7}")
    a(f"v_add_f32 v{R.l}, v{R.l}, v{t+2}\nv_add_f32 v{R.l}, v{R.l}, v{t+3}")
    for k in range(4):
        a(f"v_cvt_pk_bf16_f32 v{S+k}, v{S+2*k}, v{S+2*k+1}")
    def mask(d):
        b = R.bm + 4*(d & 1)
        for k in range(4):
            a(f"v_cndmask_b32_e64 v{b+k}, 0, v{S+k}, s[{S_MASK+2*d}:{S_MASK+2*d+1}]")
    mask(0)
    for d in range(8):
        if d + 1 < 8: mask(d + 1)
        lq.wait(("v", d, 1))
        b = R.bm + 4*(d & 1)
        a(f"v_mfma_f32_16x16x32_bf16 {vr(R.acc,4)}, {vr(R.T+4*d,4)}, {vr(b,4)}, {vr(R.acc,4)}")
    if after_v: after_v()

def emit_pass_init(a, R):
    a(f"v_mov_b32 v{R.m}, 0xff800000\nv_mov_b32 v{R.l}, 0")
    for k in range(4): a(f"v_mov_b32 v{R.acc+k}, 0")

def emit_partial_write(a, R, vlane, comb_addr_sreg, tA):
    t = R.t
    for sw in ("v_permlane16_swap_b32", "v_permlane32_swap_b32"):
        a(f"v_mov_b32 v{t+1}, v{R.l}")
        a(f"{sw} v{R.l}, v{t+1}")
        a(f"v_add_f32 v{R.l}, v{R.l}, v{t+1}")
    a(f"v_and_b32 v{tA}, 15, {vlane}\nv_lshlrev_b32 v{tA}, 6, v{tA}")
    a(f"v_lshrrev_b32 v{tA+1}, 4, {vlane}\nv_lshlrev_b32 v{tA+1}, 4, v{tA+1}")
    a(f"v_add_u32 v{tA}, v{tA}, v{tA+1}\nv_add_u32 v{tA}, {comb_addr_sreg}, v{tA}")
    a(f"v_mov_b32 v{tA+1}, {comb_addr_sreg}")
    set_exec(a, EX_NLT8)
    a(f"ds_write_b128 v{tA}, {vr(R.acc,4)}")
    set_exec(a, 1)
    assert R.l == R.m + 1
    a(f"ds_write_b64 v{tA+1}, {vr(R.m,2)} offset:512")
    set_exec(a, EX_ALL)

def emit_combine_publish(a, vlane, comb0_sreg, stride, T, soff_rec):
    O = T; ML = T + 16; M = T + 24; E = T + 25; A = T + 30; AD = T + 29
    lq = Q(a, "lgkmcnt", 15)
    a(f"v_and_b32 v{AD}, 31, {vlane}\nv_lshlrev_b32 v{AD}, 4, v{AD}\nv_add_u32 v{AD}, {comb0_sreg}, v{AD}")
    a(f"v_mov_b32 v{A}, {comb0_sreg}")
    for w in range(4):
        a(f"ds_read_b64 {vr(ML+2*w,2)}, v{A} offset:{w*stride+512}"); lq.issue(("ml", w))
    for w in range(4):
        a(f"ds_read_b128 {vr(O+4*w,4)}, v{AD} offset:{w*stride}"); lq.issue(("o", w))
    lq.wait(("ml", 3))
    a(f"v_max3_f32 v{M}, v{ML}, v{ML+2}, v{ML+4}\nv_max_f32 v{M}, v{M}, v{ML+6}")
    for w in range(4): a(f"v_sub_f32 v{E+w}, v{ML+2*w}, v{M}")
    for w in range(4): a(f"v_exp_f32 v{E+w}, v{E+w}")
    a(f"v_mul_f32 v{A+1}, v{E}, v{ML+1}")
    for w in range(1, 4): a(f"v_fmac_f32 v{A+1}, v{E+w}, v{ML+2*w+1}")
    lq.wait(("o", 3))
    for k in range(4):
        a(f"v_mul_f32 v{O+k}, v{E}, v{O+k}")
    for w in range(1, 4):
        for k in range(4):
            a(f"v_fmac_f32 v{O+k}, v{E+w}, v{O+4*w+k}")
    a(f"s_mov_b32 s32, 0\ns_mov_b32 s33, 1")
    a(f"v_cndmask_b32_e64 v{O}, v{O}, v{M}, s[32:33]")
    a(f"v_cndmask_b32_e64 v{O+1}, v{O+1}, v{A+1}, s[32:33]")
    a(f"v_cndmask_b32_e64 v{O+2}, v{O+2}, 0, s[32:33]")
    a(f"v_cndmask_b32_e64 v{O+3}, v{O+3}, 0, s[32:33]")
    a(f"v_lshlrev_b32 v{AD}, 4, {vlane}")
    set_exec(a, 0x1FFFFFFFF)
    a(f"buffer_store_dwordx4 {vr(O,4)}, v{AD}, {srd(SRD_WS)}, {soff_rec} offen sc1")
    set_exec(a, EX_ALL)
```

```python
from common_gen import *
from gen_chain import wait_arrival
S_HEAD = 80; S_J = 82; S_T = 83; S_I = 84; S_PF = 85; S_PFI = 86; S_PFB = 87; S_TMP = 88; S_TMP2 = 89
S_REG = 90; S_BASE = 91; S_SLOT = 92; S_PID = 93; S_WIDX = 94; S_T3 = 95; S_PFS = 96; S_PFN = 97; S_OFF = 98
QBUF = 0; CNT = 4096; COMB = 4352; CSTR = 544
class AR(BlkRegs):
    ka = [2, 3, 4, 5]; va = [6, 7, 8, 9, 10, 11, 12, 13]
    q = 16; S = 32; acc = 40; m = 44; l = 45; t = 46; bm = 52; T = 64
V_LANE = 1; V_DE = 14; V_DO = 15; V_L4 = 50; V_G16 = 51; V_X = 60

def pf_advance(a):
    a(f"s_mul_i32 s{S_OFF}, s{S_PFI}, {28*8192}\ns_add_u32 s{S_OFF}, s{S_OFF}, s{S_BASE}\ns_add_u32 s{S_OFF}, s{S_OFF}, s{S_PFB}")
    a(f"s_add_u32 s{S_PFI}, s{S_PFI}, 1\ns_cmp_eq_u32 s{S_PFI}, 9\ns_cselect_b32 s{S_PFI}, 0, s{S_PFI}")
    a(f"s_add_u32 s{S_PFN}, s{S_PFN}, 1\ns_cmp_eq_u32 s{S_PFN}, 9\ns_cselect_b32 s{S_PFN}, 0, s{S_PFN}")
    a(f"s_cselect_b32 s{S_TMP}, {64<<20}, 0\ns_xor_b32 s{S_PFB}, s{S_PFB}, s{S_TMP}")

def gen_attn1(a, order, pol="nt"):
    R = AR
    a.label("L_attn")
    a(f"s_lshr_b32 s{S_HEAD}, s{S_WG}, 3\ns_and_b32 s{S_WIDX}, s{S_WG}, 7\ns_sub_u32 s{S_WIDX}, s{S_WIDX}, 1")
    a(f"s_lshl_b32 s{S_J}, s{S_WIDX}, 2\ns_add_u32 s{S_J}, s{S_J}, s{S_WAVE}")
    a(f"s_lshl_b32 s{S_REG}, s{S_WAVE}, 15")
    a(f"v_and_b32 v{V_LANE}, 63, v0")
    emit_dma_voff(a, f"v{V_DE}", f"v{V_DO}", f"v{V_LANE}", f"v{R.T}", f"v{R.T+1}")
    a(f"s_lshl_b32 s{S_BASE}, s{S_HEAD}, 21\ns_lshl_b32 s{S_TMP}, s{S_J}, 13\ns_add_u32 s{S_BASE}, s{S_BASE}, s{S_TMP}")
    a(f"s_add_u32 s{S_PFI}, s{S_HEAD}, s{S_J}\ns_mul_i32 s{S_TMP}, s{S_PFI}, 7282\ns_lshr_b32 s{S_TMP}, s{S_TMP}, 16\ns_mul_i32 s{S_TMP}, s{S_TMP}, 9\ns_sub_u32 s{S_PFI}, s{S_PFI}, s{S_TMP}")
    b0 = order[0] & 1
    a(f"s_mov_b32 s{S_PFB}, {b0*(64<<20)}\ns_mov_b32 s{S_PFN}, 0")
    for slot in range(2):
        pf_advance(a)
        for (i, (sn, add)) in enumerate(((SRD_K, 0), (SRD_K, 4096), (SRD_V, 0), (SRD_V, 4096))):
            a(f"s_add_u32 s{S_TMP}, s{S_OFF}, {add}\ns_add_u32 s{S_TMP2}, s{S_REG}, {slot*16384 + i*4096}")
            dma_tile(a, sn, f"s{S_TMP}", f"s{S_TMP2}", f"v{V_DE}", f"v{V_DO}", pol)
    emit_lds_addrs(a, R, f"v{V_LANE}", f"s{S_REG}", f"v{R.T}", f"v{R.T+1}")
    emit_masks(a)
    a(f"v_lshlrev_b32 v{V_L4}, 2, v{V_LANE}\nv_lshrrev_b32 v{V_G16}, 4, v{V_LANE}\nv_lshlrev_b32 v{V_G16}, 4, v{V_G16}")
    a(f"v_mov_b32 v{V_X}, {SM+CNT}\nv_mov_b32 v{V_X+1}, 0\nv_add_u32 v{V_X}, v{V_X}, v{V_L4}")
    set_exec(a, 0xf)
    a(f"ds_write_b32 v{V_X}, v{V_X+1}")
    set_exec(a, EX_ALL)
    a("s_waitcnt lgkmcnt(0)\ns_barrier")
    wait_arrival(a, [f"v{V_X}", f"v{V_X+1}", f"v{V_X+2}"])
    seq = 0
    for t, p in enumerate(order): seq |= p << (4*t)
    a(f"s_mov_b32 s{S_T}, 0\ns_mov_b32 s{S_SLOT}, 0")
    a.label("L_aphase")
    a(f"s_lshl_b32 s{S_TMP}, s{S_T}, 2\ns_lshr_b32 s{S_PID}, {hex(seq)}, s{S_TMP}\ns_and_b32 s{S_PID}, s{S_PID}, 3")
    a(f"s_mul_i32 s{S_TMP}, s{S_PID}, {PH}\ns_lshl_b32 s{S_TMP2}, s{S_HEAD}, 8\ns_add_u32 s{S_TMP}, s{S_TMP}, s{S_TMP2}")
    poll(a, lambda: a(f"buffer_load_dword v{V_X}, v{V_L4}, {srd(SRD_WS)}, s{S_TMP} offen offset:{WS_Q} sc1"), [f"v{V_X}"], [])
    a(f"s_lshl_b32 s{S_TMP}, s{S_WAVE}, 2\ns_add_u32 s{S_TMP}, s{S_TMP}, s{S_PID}\ns_lshl_b32 s{S_TMP}, s{S_TMP}, 8\ns_add_u32 s{S_TMP}, s{S_TMP}, {SM+QBUF}")
    a(f"v_add_u32 v{V_X+1}, s{S_TMP}, v{V_L4}\nv_add_u32 v{V_X+2}, s{S_TMP}, v{V_G16}")
    a(f"ds_write_b32 v{V_X+1}, v{V_X}\ns_waitcnt lgkmcnt(0)")
    for s in range(4):
        a(f"ds_read_b128 {vr(R.q+4*s,4)}, v{V_X+2} offset:{64*s}")
    emit_pass_init(a, R)
    a("s_waitcnt lgkmcnt(0)")
    a(f"s_mov_b32 s{S_I}, 0")
    a.label("L_ablk")
    a(f"s_mul_i32 s{S_PFS}, s{S_T}, 9\ns_add_u32 s{S_PFS}, s{S_PFS}, s{S_I}\ns_add_u32 s{S_PFS}, s{S_PFS}, 2")
    a("s_waitcnt vmcnt(24)")
    Lk = a.newlabel("Lk8")
    a(f"s_cmp_lg_u32 s{S_PFS}, 37\ns_cbranch_scc1 {Lk}\ns_waitcnt vmcnt(8)")
    a.label(Lk)
    def after_k():
        L = a.newlabel("Lnk"); E = a.newlabel("Lnke")
        a(f"s_cmp_ge_u32 s{S_PFS}, 36\ns_cbranch_scc1 {L}")
        pf_advance(a)
        for i in range(2):
            a(f"s_add_u32 s{S_TMP}, s{S_OFF}, {i*4096}\ns_add_u32 s{S_TMP2}, s{S_REG}, s{S_SLOT}\ns_add_u32 s{S_TMP2}, s{S_TMP2}, {i*4096}")
            dma_tile(a, SRD_K, f"s{S_TMP}", f"s{S_TMP2}", f"v{V_DE}", f"v{V_DO}", pol)
        a(f"s_waitcnt vmcnt(24)\ns_branch {E}")
        a.label(L)
        a(f"s_cmp_eq_u32 s{S_PFS}, 37\ns_cbranch_scc1 {L}z\ns_waitcnt vmcnt(16)\ns_branch {E}")
        a.label(L + "z")
        a("s_waitcnt vmcnt(0)")
        a.label(E)
    def after_v():
        L = a.newlabel("Lnv")
        a(f"s_cmp_ge_u32 s{S_PFS}, 36\ns_cbranch_scc1 {L}")
        for i in range(2):
            a(f"s_add_u32 s{S_TMP}, s{S_OFF}, {i*4096}\ns_add_u32 s{S_TMP2}, s{S_REG}, s{S_SLOT}\ns_add_u32 s{S_TMP2}, s{S_TMP2}, {8192 + i*4096}")
            dma_tile(a, SRD_V, f"s{S_TMP}", f"s{S_TMP2}", f"v{V_DE}", f"v{V_DO}", pol)
        a.label(L)
    emit_block(a, R, (0, 4096), (8192, 12288), after_k=after_k, after_v=after_v)
    a(f"s_xor_b32 s{S_SLOT}, s{S_SLOT}, 16384")
    for r in R.ka + R.va: a(f"v_xor_b32 v{r}, 0x4000, v{r}")
    a(f"s_add_u32 s{S_I}, s{S_I}, 1\ns_cmp_lt_u32 s{S_I}, 9\ns_cbranch_scc1 L_ablk")
    a(f"s_lshl_b32 s{S_TMP}, s{S_PID}, 2\ns_add_u32 s{S_TMP2}, s{S_TMP}, s{S_WAVE}\ns_mul_i32 s{S_TMP2}, s{S_TMP2}, {CSTR}\ns_add_u32 s{S_TMP2}, s{S_TMP2}, {SM+COMB}")
    emit_partial_write(a, R, f"v{V_LANE}", f"s{S_TMP2}", R.T)
    a(f"s_add_u32 s{S_TMP}, s{S_TMP}, {SM+CNT}\nv_mov_b32 v{V_X}, s{S_TMP}\nv_mov_b32 v{V_X+1}, 1")
    a("s_waitcnt lgkmcnt(0)")
    set_exec(a, 1)
    a(f"ds_add_rtn_u32 v{V_X+2}, v{V_X}, v{V_X+1}\ns_waitcnt lgkmcnt(0)")
    a(f"v_readfirstlane_b32 s{S_TMP}, v{V_X+2}")
    set_exec(a, EX_ALL)
    Ls = a.newlabel("Lnopub")
    a(f"s_cmp_lg_u32 s{S_TMP}, 3\ns_cbranch_scc1 {Ls}")
    a(f"s_mul_i32 s{S_TMP}, s{S_PID}, {4*CSTR}\ns_add_u32 s{S_TMP}, s{S_TMP}, {SM+COMB}")
    a(f"s_lshl_b32 s{S_TMP2}, s{S_HEAD}, 3\ns_add_u32 s{S_TMP2}, s{S_TMP2}, s{S_WIDX}\ns_mul_i32 s{S_TMP2}, s{S_TMP2}, {PART_REC}")
    a(f"s_mul_i32 s{S_T3}, s{S_PID}, {PH}\ns_add_u32 s{S_TMP2}, s{S_TMP2}, s{S_T3}\ns_add_u32 s{S_TMP2}, s{S_TMP2}, {WS_PART}")
    emit_combine_publish(a, f"v{V_LANE}", f"s{S_TMP}", CSTR, R.T, f"s{S_TMP2}")
    a.label(Ls)
    a(f"s_add_u32 s{S_T}, s{S_T}, 1\ns_cmp_lt_u32 s{S_T}, 4\ns_cbranch_scc1 L_aphase")
    a("s_waitcnt vmcnt(0)\ns_endpgm")
```

```python
from common_gen import *

XB_O = 0; XB_1 = 1024; XB_Q = 2048; X1F = 3072; STAT1 = 5120; STATQ = 5152; RED = 5184
QB = 5440; HB = 6144; CCOMB = 10240; CSTR = 544
S_C = 80; S_T = 82; S_PID = 83; S_B = 84; S_LAYER = 85; S_PH = 86; S_TMP = 87; S_TMP2 = 88; S_REG = 89
S_HG = 90; S_CG = 91; S_T3 = 92; S_T4 = 93; S_QPH = 94; S_DRY = 95; S_CC = 96
V_TID = 0; V_LANE = 1; V_B = 2; V_T4 = 3; V_T8 = 4; V_X1W = 5
V_XR = 6
V_CSQ = 10
V_CS1 = 18
V_B1 = 22
V_B2 = 26
V_PO = 27; V_PML = 28
V_G16 = 29
V_XC = 30
V_G8 = 32
V_HBW = 33; V_HBR = 34; V_RDW = 35; V_RDR = 36; V_L16 = 37; V_XBO = 38; V_L4 = 39
class CR(BlkRegs):
    ka = [40, 41, 42, 43]; va = [44, 45, 46, 47, 48, 49, 50, 51]
    q = 52; S = 68; acc = 76; m = 80; l = 81; t = 82; bm = 88; T = 96
V_DE = 86; V_DO = 87
TMP = 96
BT = 64
A_WQ = 0; A_WO = 128; V_W1 = 192; V_W2 = 136
MF = "v_mfma_f32_16x16x32_bf16"

def load_weights_seg64(a, srdn, rowstride, s_off0, abase):
    t0, t1 = f"v{TMP}", f"v{TMP+1}"
    a(f"v_lshrrev_b32 {t0}, 2, v{V_LANE}\nv_mul_u32_u24 {t0}, {rowstride}, {t0}")
    a(f"v_and_b32 {t1}, 3, v{V_LANE}\nv_lshlrev_b32 {t1}, 4, {t1}\nv_add_u32 {t0}, {t0}, {t1}")
    a(f"s_mov_b32 s{S_TMP}, s{S_REG}\ns_mov_b32 s{S_TMP2}, {s_off0}\ns_mov_b32 s{S_T3}, 32")
    L = a.newlabel("Lw64")
    a.label(L)
    a(f"s_mov_b32 m0, s{S_TMP}")
    a(f"buffer_load_dwordx4 {t0}, {srd(srdn)}, s{S_TMP2} offen lds")
    a(f"s_add_u32 s{S_TMP}, s{S_TMP}, 1024\ns_add_u32 s{S_TMP2}, s{S_TMP2}, {16*rowstride}")
    a(f"s_sub_u32 s{S_T3}, s{S_T3}, 1\ns_cmp_lg_u32 s{S_T3}, 0\ns_cbranch_scc1 {L}")
    return lambda: read_weights_seg64(a, abase)

def read_weights_seg64(a, abase):
    t0, t1 = f"v{TMP}", f"v{TMP+1}"
    a(f"v_lshrrev_b32 {t0}, 4, v{V_LANE}\nv_lshlrev_b32 {t0}, 3, {t0}")
    a(f"v_bfe_u32 {t1}, v{V_LANE}, 2, 2\nv_add_u32 {t0}, {t0}, {t1}\nv_lshlrev_b32 {t0}, 6, {t0}")
    a(f"v_and_b32 {t1}, 3, v{V_LANE}\nv_lshlrev_b32 {t1}, 3, {t1}\nv_add_u32 {t0}, {t0}, {t1}")
    a(f"v_add_u32 {t0}, s{S_REG}, {t0}")
    a("s_waitcnt vmcnt(0)")
    for ct in range(2):
        for s in range(16):
            for h in range(2):
                r = abase + (ct*16 + s)*4 + 2*h
                a(f"ds_read_b64_tr_b16 {ar(r,2)}, {t0} offset:{s*2048 + h*256 + ct*32}")
    a("s_waitcnt lgkmcnt(0)")

def load_w12(a):
    t0, t1, t2 = f"v{TMP}", f"v{TMP+1}", f"v{TMP+2}"
    a(f"v_lshrrev_b32 {t0}, 1, v{V_LANE}\nv_mul_u32_u24 {t2}, 1024, {t0}\nv_mul_u32_u24 {t0}, 3584, {t0}")
    a(f"v_and_b32 {t1}, 1, v{V_LANE}\nv_lshlrev_b32 {t1}, 4, {t1}\nv_add_u32 {t0}, {t0}, {t1}\nv_add_u32 {t2}, {t2}, {t1}")
    a(f"s_lshl_b32 s{S_TMP2}, s{S_CC}, 2\ns_add_u32 s{S_TMP2}, s{S_TMP2}, s{S_WAVE}\ns_lshl_b32 s{S_TMP2}, s{S_TMP2}, 5")
    a(f"s_mov_b32 s{S_TMP}, s{S_REG}\ns_mov_b32 s{S_T3}, 16")
    L = a.newlabel("Lw1"); a.label(L)
    a(f"s_mov_b32 m0, s{S_TMP}")
    a(f"buffer_load_dwordx4 {t0}, {srd(SRD_W1)}, s{S_TMP2} offen lds")
    a(f"s_add_u32 s{S_TMP}, s{S_TMP}, 1024\ns_add_u32 s{S_TMP2}, s{S_TMP2}, {32*3584}")
    a(f"s_sub_u32 s{S_T3}, s{S_T3}, 1\ns_cmp_lg_u32 s{S_T3}, 0\ns_cbranch_scc1 {L}")
    a(f"s_mul_i32 s{S_TMP2}, s{S_WAVE}, {448*1024}\ns_lshl_b32 s{S_T4}, s{S_C}, 5\ns_add_u32 s{S_TMP2}, s{S_TMP2}, s{S_T4}")
    a(f"s_mov_b32 s{S_T3}, 14")
    L = a.newlabel("Lw2"); a.label(L)
    a(f"s_mov_b32 m0, s{S_TMP}")
    a(f"buffer_load_dwordx4 {t2}, {srd(SRD_W2)}, s{S_TMP2} offen lds")
    a(f"s_add_u32 s{S_TMP}, s{S_TMP}, 1024\ns_add_u32 s{S_TMP2}, s{S_TMP2}, {32*1024}")
    a(f"s_sub_u32 s{S_T3}, s{S_T3}, 1\ns_cmp_lg_u32 s{S_T3}, 0\ns_cbranch_scc1 {L}")
    a(f"v_lshrrev_b32 {t0}, 4, v{V_LANE}\nv_lshlrev_b32 {t0}, 3, {t0}")
    a(f"v_bfe_u32 {t1}, v{V_LANE}, 2, 2\nv_add_u32 {t0}, {t0}, {t1}\nv_lshlrev_b32 {t0}, 5, {t0}")
    a(f"v_and_b32 {t1}, 3, v{V_LANE}\nv_lshlrev_b32 {t1}, 3, {t1}\nv_add_u32 {t0}, {t0}, {t1}")
    a(f"v_add_u32 {t0}, s{S_REG}, {t0}")
    a("s_waitcnt vmcnt(0)")
    for s in range(16):
        for h in range(2):
            a(f"ds_read_b64_tr_b16 {vr(V_W1 + s*4 + 2*h,2)}, {t0} offset:{s*1024 + h*128}")
    for s in range(14):
        for h in range(2):
            a(f"ds_read_b64_tr_b16 {vr(V_W2 + s*4 + 2*h,2)}, {t0} offset:{16384 + s*1024 + h*128}")
    a("s_waitcnt lgkmcnt(0)")

def colsum(a, A, ntile, nstep, dst):
    ones = TMP
    for k in range(4): a(f"v_mov_b32 v{ones+k}, 0x3f803f80")
    for s in range(nstep):
        for ct in range(ntile):
            C = "0" if s == 0 else vr(dst + 4*ct, 4)
            a(f"{MF} {vr(dst+4*ct,4)}, {A(ct,s)}, {vr(ones,4)}, {C}")

def gemv(a, lq, A, ntile, nstep, D, baddr, boff, pre=None, shadow=None):
    shadow = list(shadow or [])
    ahead = min(nstep, 13)
    for s in range(ahead):
        a(f"ds_read_b128 {vr(BT+4*s,4)}, {baddr} offset:{boff + 64*s}"); lq.issue(("b", s))
    if pre: pre()
    for s in range(nstep):
        if s + ahead < nstep:
            sn = s + ahead
            a(f"ds_read_b128 {vr(BT+4*sn,4)}, {baddr} offset:{boff + 64*sn}"); lq.issue(("b", sn))
        lq.wait(("b", s))
        for ct in range(ntile):
            C = "0" if s == 0 else vr(D + 4*ct, 4)
            a(f"{MF} {vr(D+4*ct,4)}, {A(ct,s)}, {vr(BT+4*s,4)}, {C}")
            for _ in range(2):
                if shadow: a(shadow.pop(0))
    for l in shadow: a(l)

def x_to_lds_stats(a, xb, stat, f32copy):
    t = TMP
    x0, x1 = f"v{V_XC}", f"v{V_XC+1}"
    a(f"v_cvt_pk_bf16_f32 v{t+2}, {x0}, {x1}")
    a(f"v_add_f32 v{t}, {x0}, {x1}\nv_mul_f32 v{t+1}, {x0}, {x0}")
    a(f"ds_write_b32 v{V_T4}, v{t+2} offset:{xb}")
    a(f"v_fmac_f32 v{t+1}, {x1}, {x1}")
    if f32copy:
        a(f"ds_write_b64 v{V_X1W}, {vr(V_XC,2)} offset:{X1F}")
    for k in (1, 2, 4, 8):
        a(f"v_add_f32_dpp v{t}, v{t}, v{t} row_shr:{k} row_mask:0xf bank_mask:0xf")
        a(f"v_add_f32_dpp v{t+1}, v{t+1}, v{t+1} row_shr:{k} row_mask:0xf bank_mask:0xf")
    for (bc, rm) in ((15, "0xa"), (31, "0xc")):
        a(f"v_add_f32_dpp v{t}, v{t}, v{t} row_bcast:{bc} row_mask:{rm} bank_mask:0xf")
        a(f"v_add_f32_dpp v{t+1}, v{t+1}, v{t+1} row_bcast:{bc} row_mask:{rm} bank_mask:0xf")
    a(f"s_lshl_b32 s{S_TMP}, s{S_WAVE}, 3\ns_add_u32 s{S_TMP}, s{S_TMP}, {SM + stat}\nv_mov_b32 v{t+2}, s{S_TMP}")
    set_exec(a, 1 << 63)
    a(f"ds_write_b64 v{t+2}, {vr(t,2)}")
    set_exec(a, EX_ALL)
    a("s_waitcnt lgkmcnt(0)\ns_barrier")

V_MEAN = 132; V_RSTD = 133
def stat_reads(a, lq, stat):
    st = 128
    a(f"v_mov_b32 v{st+7}, {SM}")
    a(f"ds_read_b128 {vr(st-0,4)}, v{st+7} offset:{stat}"); lq.issue("st0")
    a(f"ds_read_b128 {vr(60,4)}, v{st+7} offset:{stat+16}"); lq.issue("st1")
def stat_shadow():
    st = 128
    return [
        f"v_add_f32 v128, v128, v130", f"v_add_f32 v129, v129, v131",
        f"v_add_f32 v60, v60, v62", f"v_add_f32 v61, v61, v63",
        f"v_add_f32 v128, v128, v60", f"v_add_f32 v129, v129, v61",
        f"v_mul_f32 v{V_MEAN}, {f2h(1/512)}, v128", f"v_mul_f32 v129, {f2h(1/512)}, v129",
        f"v_fma_f32 v129, -v{V_MEAN}, v{V_MEAN}, v129", f"v_add_f32 v129, {f2h(1e-5)}, v129",
        f"v_max_f32 v129, {f2h(1e-5)}, v129",
        f"v_rsq_f32 v{V_RSTD}, v129",
    ]

def stage_O(a):
    a.comment("---- stage O: combine partials, o @ wo")
    T = BT
    O = T; ML = T + 16; M = T + 24; E = T + 25; Lr = T + 29; t = T + 30
    a(f"s_lshl_b32 s{S_TMP}, s{S_HG}, 2\ns_add_u32 s{S_TMP}, s{S_TMP}, s{S_WAVE}\ns_mul_i32 s{S_TMP}, s{S_TMP}, {8*PART_REC}")
    a(f"s_add_u32 s{S_TMP}, s{S_TMP}, s{S_PH}\ns_add_u32 s{S_TMP}, s{S_TMP}, {WS_PART}")
    def loads():
        for u in range(4):
            a(f"buffer_load_dwordx4 {vr(O+4*u,4)}, v{V_PO}, {srd(SRD_WS)}, s{S_TMP} offen offset:{u*PART_REC} sc1")
        for u in range(4):
            a(f"buffer_load_dwordx2 {vr(ML+2*u,2)}, v{V_PML}, {srd(SRD_WS)}, s{S_TMP} offen offset:{u*PART_REC} sc1")
    poll(a, loads, [f"v{O+k}" for k in range(24)], [f"v{t}", f"v{t+1}"])
    a(f"v_max3_f32 v{M}, v{ML}, v{ML+2}, v{ML+4}\nv_max_f32 v{M}, v{M}, v{ML+6}")
    a(f"v_mov_b32 v{t}, v{M}\nv_permlane32_swap_b32 v{M}, v{t}\nv_max_f32 v{M}, v{M}, v{t}")
    for u in range(4): a(f"v_sub_f32 v{E+u}, v{ML+2*u}, v{M}")
    for u in range(4): a(f"v_exp_f32 v{E+u}, v{E+u}")
    a(f"v_mul_f32 v{Lr}, v{E}, v{ML+1}")
    for k in range(4): a(f"v_mul_f32 v{O+k}, v{E}, v{O+k}")
    for u in range(1, 4):
        a(f"v_fmac_f32 v{Lr}, v{E+u}, v{ML+2*u+1}")
        for k in range(4): a(f"v_fmac_f32 v{O+k}, v{E+u}, v{O+4*u+k}")
    a(f"v_mov_b32 v{t}, v{Lr}")
    a(f"v_permlane32_swap_b32 v{O}, v{O+2}")
    a(f"v_permlane32_swap_b32 v{Lr}, v{t}")
    a(f"v_permlane32_swap_b32 v{O+1}, v{O+3}")
    a(f"v_add_f32 v{Lr}, v{Lr}, v{t}\nv_add_f32 v{O}, v{O}, v{O+2}\nv_rcp_f32 v{Lr}, v{Lr}\nv_add_f32 v{O+1}, v{O+1}, v{O+3}")
    a(f"v_mul_f32 v{O}, v{O}, v{Lr}\nv_mul_f32 v{O+1}, v{O+1}, v{Lr}")
    a(f"v_cvt_pk_bf16_f32 v{O}, v{O}, v{O+1}")
    a(f"ds_write_b32 v{V_XBO}, v{O} offset:{XB_O}")
    a("s_waitcnt lgkmcnt(0)\ns_barrier")
    lq = Q(a, "lgkmcnt", 15)
    D = 128
    gemv(a, lq, lambda ct, s: ar(A_WO + (ct*16 + s)*4, 4), 2, 16, D, f"v{V_B}", XB_O)
    a(f"s_lshl_b32 s{S_TMP}, s{S_HG}, 11\ns_add_u32 s{S_TMP}, s{S_TMP}, s{S_PH}\ns_add_u32 s{S_TMP}, s{S_TMP}, {WS_Y}")
    a(f"s_lshl_b32 s{S_TMP2}, s{S_CG}, 2\ns_add_u32 s{S_TMP2}, s{S_TMP2}, s{S_WAVE}\ns_lshl_b32 s{S_TMP2}, s{S_TMP2}, 7\ns_add_u32 s{S_TMP}, s{S_TMP}, s{S_TMP2}")
    set_exec(a, EX_N0)
    for ct in range(2):
        a(f"buffer_store_dwordx4 {vr(D+4*ct,4)}, v{V_G16}, {srd(SRD_WS)}, s{S_TMP} offen offset:{64*ct} sc1")
    set_exec(a, EX_ALL)

def stage_W1(a):
    a.comment("---- stage W1: x1 = x + sum Y ; LN ; w1 ; gelu")
    T = BT
    a(f"s_add_u32 s{S_TMP}, s{S_PH}, {WS_Y}\ns_add_u32 s{S_TMP2}, s{S_TMP}, 4096\ns_add_u32 s{S_T3}, s{S_TMP}, 8192\ns_add_u32 s{S_T4}, s{S_TMP}, 12288")
    so = [S_TMP, S_TMP2, S_T3, S_T4]
    def loads():
        for u in range(8):
            a(f"buffer_load_dwordx2 {vr(T+2*u,2)}, v{V_T8}, {srd(SRD_WS)}, s{so[u//2]} offen offset:{(u%2)*2048} sc1")
    poll(a, loads, [f"v{T+k}" for k in range(16)], [f"v{T+16}", f"v{T+17}"])
    for k in range(2):
        a(f"v_add_f32 v{T+k}, v{T+k}, v{T+2+k}\nv_add_f32 v{T+4+k}, v{T+4+k}, v{T+6+k}")
        a(f"v_add_f32 v{T+8+k}, v{T+8+k}, v{T+10+k}\nv_add_f32 v{T+12+k}, v{T+12+k}, v{T+14+k}")
    for k in range(2):
        a(f"v_add_f32 v{T+k}, v{T+k}, v{T+4+k}\nv_add_f32 v{T+8+k}, v{T+8+k}, v{T+12+k}")
    for k in range(2):
        a(f"v_add_f32 v{V_XC+k}, v{V_XC+k}, v{T+k}")
    for k in range(2):
        a(f"v_add_f32 v{V_XC+k}, v{V_XC+k}, v{T+8+k}")
    x_to_lds_stats(a, XB_1, STAT1, True)
    lq = Q(a, "lgkmcnt", 15)
    stat_reads(a, lq, STAT1)
    D = 56
    gemv(a, lq, lambda ct, s: vr(V_W1 + 4*s, 4), 1, 16, D, f"v{V_B}", XB_1, pre=lambda: lq.wait("st1"), shadow=stat_shadow())
    z = T; u = T + 4
    K1 = 2*math.sqrt(2/math.pi)*math.log2(math.e); K2 = K1*0.044715
    a(f"s_mov_b32 s{S_T3}, {f2h(-K1)}\ns_mov_b32 s{S_T4}, {f2h(-K2)}")
    for k in range(4): a(f"v_fma_f32 v{z+k}, -v{V_MEAN}, v{V_CS1+k}, v{D+k}")
    for k in range(4): a(f"v_fma_f32 v{z+k}, v{z+k}, v{V_RSTD}, v{V_B1+k}")
    for k in range(4): a(f"v_mul_f32 v{u+k}, v{z+k}, v{z+k}")
    a(f"v_mov_b32 v{u+4}, s{S_T3}")
    for k in range(4): a(f"v_fma_f32 v{u+k}, v{u+k}, s{S_T4}, v{u+4}")
    for k in range(4): a(f"v_mul_f32 v{u+k}, v{u+k}, v{z+k}")
    for k in range(4): a(f"v_exp_f32 v{u+k}, v{u+k}")
    for k in range(4): a(f"v_add_f32 v{u+k}, 1.0, v{u+k}")
    for k in range(4): a(f"v_rcp_f32 v{u+k}, v{u+k}")
    for k in range(4): a(f"v_mul_f32 v{z+k}, v{z+k}, v{u+k}")
    a(f"v_cvt_pk_bf16_f32 v{z}, v{z}, v{z+1}\nv_cvt_pk_bf16_f32 v{z+1}, v{z+2}, v{z+3}")
    Ls = a.newlabel("Lnoh")
    a(f"s_cmp_ge_u32 s{S_C}, 28\ns_cbranch_scc1 {Ls}")
    a(f"s_lshl_b32 s{S_TMP}, s{S_C}, 2\ns_add_u32 s{S_TMP}, s{S_TMP}, s{S_WAVE}\ns_lshl_b32 s{S_TMP}, s{S_TMP}, 5")
    a(f"s_add_u32 s{S_TMP}, s{S_TMP}, s{S_PH}\ns_add_u32 s{S_TMP}, s{S_TMP}, {WS_H}")
    set_exec(a, EX_N0)
    a(f"buffer_store_dwordx2 {vr(z,2)}, v{V_G8}, {srd(SRD_WS)}, s{S_TMP} offen sc1")
    set_exec(a, EX_ALL)
    a.label(Ls)

def stage_W2(a):
    a.comment("---- stage W2: x2 = x1 + h @ w2 + b2 (16 columns per WG)")
    T = BT
    a(f"s_mul_i32 s{S_TMP}, s{S_WAVE}, 896\ns_add_u32 s{S_TMP}, s{S_TMP}, s{S_PH}\ns_add_u32 s{S_TMP}, s{S_TMP}, {WS_H}")
    set_exec(a, (1 << 56) - 1)
    def loads():
        a(f"buffer_load_dwordx4 {vr(T,4)}, v{V_L16}, {srd(SRD_WS)}, s{S_TMP} offen sc1")
    poll(a, loads, [f"v{T+k}" for k in range(4)], [f"v{T+4}", f"v{T+5}"])
    a(f"ds_write_b128 v{V_HBW}, {vr(T,4)}")
    set_exec(a, EX_ALL)
    a("s_waitcnt lgkmcnt(0)")
    lq = Q(a, "lgkmcnt", 15)
    D = 128
    gemv(a, lq, lambda ct, s: vr(V_W2 + 4*s, 4), 1, 14, D, f"v{V_HBR}", 0)
    set_exec(a, EX_N0)
    a(f"ds_write_b128 v{V_RDW}, {vr(D,4)}")
    set_exec(a, EX_ALL)
    a("s_waitcnt lgkmcnt(0)\ns_barrier")
    for w in range(4):
        a(f"ds_read_b32 v{T+w}, v{V_RDR} offset:{64*w}")
    a(f"s_lshl_b32 s{S_TMP}, s{S_C}, 6\nv_add_u32 v{T+5}, s{S_TMP}, v{V_RDR}")
    a(f"v_add_u32 v{T+5}, {(X1F - RED) & 0xffffffff if X1F < RED else X1F - RED}, v{T+5}")
    a(f"ds_read_b32 v{T+4}, v{T+5}")
    a("s_waitcnt lgkmcnt(0)")
    a(f"v_add_f32 v{T}, v{T}, v{T+1}\nv_add_f32 v{T+2}, v{T+2}, v{T+3}\nv_add_f32 v{T+4}, v{T+4}, v{V_B2}")
    a(f"v_add_f32 v{T}, v{T}, v{T+2}\nv_add_f32 v{T}, v{T}, v{T+4}")

def stage_Q_core(a, s_qph):
    a.comment("---- stage Q core")
    x_to_lds_stats(a, XB_Q, STATQ, False)
    lq = Q(a, "lgkmcnt", 15)
    stat_reads(a, lq, STATQ)
    D = 52
    gemv(a, lq, lambda ct, s: ar(A_WQ + (ct*16 + s)*4, 4), 2, 16, D, f"v{V_B}", XB_Q, pre=lambda: lq.wait("st1"), shadow=stat_shadow())
    z = BT
    a(f"v_mul_f32 v{V_RSTD}, {f2h(QSCALE)}, v{V_RSTD}")
    for k in range(8): a(f"v_fma_f32 v{z+k}, -v{V_MEAN}, v{V_CSQ+k}, v{D+k}")
    for k in range(8): a(f"v_mul_f32 v{z+k}, v{z+k}, v{V_RSTD}")
    for k in range(4): a(f"v_cvt_pk_bf16_f32 v{z+k}, v{z+2*k}, v{z+2*k+1}")
    a(f"s_lshl_b32 s{S_TMP}, s{S_C}, 8\ns_lshl_b32 s{S_TMP2}, s{S_WAVE}, 6\ns_add_u32 s{S_TMP}, s{S_TMP}, s{S_TMP2}")
    a(f"s_add_u32 s{S_TMP}, s{S_TMP}, {s_qph}")
    a(f"s_lshl_b32 s{S_T3}, s{S_B}, 8\ns_add_u32 s{S_T3}, s{S_T3}, s{S_TMP2}\ns_add_u32 s{S_T3}, s{S_T3}, {SM+QB}")
    a(f"v_add_u32 v{z+4}, s{S_T3}, v{V_G8}")
    set_exec(a, EX_N0)
    for ct in range(2):
        a(f"buffer_store_dwordx2 {vr(z+2*ct,2)}, v{V_G8}, {srd(SRD_WS)}, s{S_TMP} offen offset:{WS_Q + 32*ct} sc1")
    for ct in range(2):
        a(f"ds_write_b64 v{z+4}, {vr(z+2*ct,2)} offset:{32*ct}")
    set_exec(a, EX_ALL)

def leftover_pass(a, s_ph):
    a.comment("---- leftover block pass")
    R = CR
    a("s_waitcnt lgkmcnt(0)\ns_barrier")
    a(f"s_lshl_b32 s{S_TMP}, s{S_B}, 8\nv_add_u32 v{R.T}, s{S_TMP}, v{V_B}")
    for s in range(4):
        a(f"ds_read_b128 {vr(R.q+4*s,4)}, v{R.T} offset:{QB + 64*s}")
    a(f"s_lshl_b32 s{S_TMP2}, s{S_B}, 14\ns_add_u32 s{S_TMP2}, s{S_TMP2}, s{S_REG}")
    emit_lds_addrs(a, R, f"v{V_LANE}", f"s{S_TMP2}", f"v{R.t}", f"v{R.t+1}")
    emit_pass_init(a, R)
    a("s_waitcnt lgkmcnt(0)")
    emit_block(a, R, (0, 4096), (8192, 12288))
    a(f"s_mul_i32 s{S_TMP}, s{S_WAVE}, {CSTR}\ns_add_u32 s{S_TMP}, s{S_TMP}, {SM+CCOMB}")
    emit_partial_write(a, R, f"v{V_LANE}", f"s{S_TMP}", R.T)
    a("s_waitcnt lgkmcnt(0)\ns_barrier")
    Ls = a.newlabel("Lnp")
    a(f"s_cmp_lg_u32 s{S_WAVE}, 0\ns_cbranch_scc1 {Ls}")
    a(f"s_lshl_b32 s{S_TMP2}, s{S_C}, 3\ns_add_u32 s{S_TMP2}, s{S_TMP2}, 7\ns_mul_i32 s{S_TMP2}, s{S_TMP2}, {PART_REC}")
    a(f"s_add_u32 s{S_TMP2}, s{S_TMP2}, {s_ph}\ns_add_u32 s{S_TMP2}, s{S_TMP2}, {WS_PART}")
    a(f"s_mov_b32 s{S_TMP}, {SM+CCOMB}")
    emit_combine_publish(a, f"v{V_LANE}", f"s{S_TMP}", CSTR, R.T, f"s{S_TMP2}")
    a.label(Ls)

def load_x_input(a):
    a(f"s_lshl_b32 s{S_TMP}, s{S_B}, 10")
    a(f"v_lshlrev_b32 v{TMP}, 2, v{V_TID}")
    a(f"buffer_load_dword v{TMP+1}, v{TMP}, {srd(SRD_X)}, s{S_TMP} offen")
    a("s_waitcnt vmcnt(0)")
    a(f"v_lshlrev_b32 v{V_XC}, 16, v{TMP+1}\nv_and_b32 v{V_XC+1}, 0xffff0000, v{TMP+1}")

def save_x(a):
    Lb = a.newlabel("Lsx"); Le = a.newlabel("Lsxe")
    a(f"s_cmp_eq_u32 s{S_B}, 0\ns_cbranch_scc0 {Lb}")
    a(f"v_mov_b32 v{V_XR}, v{V_XC}\nv_mov_b32 v{V_XR+1}, v{V_XC+1}\ns_branch {Le}")
    a.label(Lb)
    a(f"v_mov_b32 v{V_XR+2}, v{V_XC}\nv_mov_b32 v{V_XR+3}, v{V_XC+1}")
    a.label(Le)
def restore_x(a):
    Lb = a.newlabel("Lrx"); Le = a.newlabel("Lrxe")
    a(f"s_cmp_eq_u32 s{S_B}, 0\ns_cbranch_scc0 {Lb}")
    a(f"v_mov_b32 v{V_XC}, v{V_XR}\nv_mov_b32 v{V_XC+1}, v{V_XR+1}\ns_branch {Le}")
    a.label(Lb)
    a(f"v_mov_b32 v{V_XC}, v{V_XR+2}\nv_mov_b32 v{V_XC+1}, v{V_XR+3}")
    a.label(Le)

def wait_arrival(a, vt):
    L = a.newlabel("Larr"); D = a.newlabel("Larrd")
    a(f"v_mov_b32 {vt[1]}, 0")
    a.label(L)
    a(f"buffer_load_dword {vt[0]}, {vt[1]}, {srd(SRD_DBG)}, 0 offen sc1")
    a(f"s_waitcnt vmcnt(0)\nv_and_b32 {vt[2]}, 63, {vt[0]}\nv_cmp_ne_u32 vcc, 32, {vt[2]}")
    a(f"s_cbranch_vccz {D}")
    a(f"s_sub_u32 s{S_BUD}, s{S_BUD}, 1\ns_cbranch_scc0 {L}\ns_mov_b32 s{S_BUD}, 0")
    a.label(D)

def gen_chain(a, order):
    a.label("L_chain")
    a(f"s_lshr_b32 s{S_C}, s{S_WG}, 3")
    a(f"s_min_u32 s{S_CC}, s{S_C}, 27")
    a(f"s_lshr_b32 s{S_HG}, s{S_C}, 2\ns_and_b32 s{S_CG}, s{S_C}, 3")
    a(f"s_mul_i32 s{S_REG}, s{S_WAVE}, {WREG}")
    a(f"v_and_b32 v{V_LANE}, 63, v{V_TID}")
    t0, t1 = f"v{TMP}", f"v{TMP+1}"
    a(f"s_lshl_b32 s{S_T4}, s{S_C}, 8\ns_lshl_b32 s{S_TMP}, s{S_WAVE}, 6\ns_add_u32 s{S_T4}, s{S_T4}, s{S_TMP}")
    rd = load_weights_seg64(a, SRD_WQ, 8192, f"s{S_T4}", A_WQ)
    a(f"s_lshl_b32 s{S_TMP}, s{S_C}, 2\ns_add_u32 s{S_TMP}, s{S_TMP}, s{S_WAVE}\ns_mul_i32 s{S_TMP}, s{S_TMP}, 6144")
    a(f"v_lshlrev_b32 v{V_L16}, 4, v{V_LANE}")
    for k in range(4): a(f"v_mov_b32 v{TMP+4+k}, -1")
    for i in range(6):
        if i == 4: a(f"s_add_u32 s{S_TMP}, s{S_TMP}, 4096")
        a(f"buffer_store_dwordx4 {vr(TMP+4,4)}, v{V_L16}, {srd(SRD_WS)}, s{S_TMP} offen offset:{(i%4)*1024} sc1")
    a(f"v_lshrrev_b32 {t1}, 4, v{V_LANE}")
    a(f"v_lshlrev_b32 v{V_G16}, 4, {t1}\nv_lshlrev_b32 v{V_G8}, 3, {t1}")
    a(f"v_add_u32 v{V_B}, {SM}, v{V_G16}")
    a(f"v_lshlrev_b32 v{V_T4}, 2, v{V_TID}\nv_add_u32 v{V_T4}, {SM}, v{V_T4}")
    a(f"v_lshlrev_b32 v{V_T8}, 3, v{V_TID}\nv_add_u32 v{V_X1W}, {SM}, v{V_T8}")
    a(f"v_lshrrev_b32 {t1}, 5, v{V_LANE}\nv_mul_u32_u24 {t1}, {4*PART_REC}, {t1}")
    a(f"v_add_u32 v{V_PML}, 512, {t1}")
    a(f"v_and_b32 v{V_PO}, 31, v{V_LANE}\nv_lshlrev_b32 v{V_PO}, 4, v{V_PO}\nv_add_u32 v{V_PO}, v{V_PO}, {t1}")
    a(f"v_and_b32 v{V_XBO}, 31, v{V_LANE}\nv_lshlrev_b32 v{V_XBO}, 1, v{V_XBO}\nv_lshrrev_b32 {t1}, 5, v{V_LANE}\nv_add_u32 v{V_XBO}, v{V_XBO}, {t1}")
    a(f"v_lshlrev_b32 v{V_XBO}, 2, v{V_XBO}\ns_lshl_b32 s{S_TMP}, s{S_WAVE}, 8\ns_add_u32 s{S_TMP}, s{S_TMP}, {SM}\nv_add_u32 v{V_XBO}, s{S_TMP}, v{V_XBO}")
    a(f"s_lshl_b32 s{S_TMP}, s{S_WAVE}, 10\ns_add_u32 s{S_TMP}, s{S_TMP}, {SM+HB}")
    a(f"v_add_u32 v{V_HBW}, s{S_TMP}, v{V_L16}\nv_add_u32 v{V_HBR}, s{S_TMP}, v{V_G16}")
    a(f"s_lshl_b32 s{S_TMP}, s{S_WAVE}, 6\ns_add_u32 s{S_TMP}, s{S_TMP}, {SM+RED}\nv_add_u32 v{V_RDW}, s{S_TMP}, v{V_G16}")
    a(f"v_and_b32 v{V_L4}, 15, v{V_LANE}\nv_lshlrev_b32 v{V_L4}, 2, v{V_L4}\nv_add_u32 v{V_RDR}, {SM+RED}, v{V_L4}")
    emit_masks(a)
    rd()
    a("s_barrier")
    La = a.newlabel("Lnoarr")
    a(f"s_cmp_lg_u32 s{S_WAVE}, 0\ns_cbranch_scc1 {La}")
    a(f"s_getreg_b32 s{S_TMP}, hwreg(HW_REG_XCC_ID)\ns_and_b32 s{S_TMP}, s{S_TMP}, 15")
    a(f"s_mul_i32 s{S_TMP2}, s{S_TMP}, s{S_TMP}\ns_lshl_b32 s{S_TMP2}, s{S_TMP2}, 15\ns_lshl_b32 s{S_TMP}, s{S_TMP}, 6")
    a(f"s_add_u32 s{S_TMP}, s{S_TMP}, s{S_TMP2}\ns_add_u32 s{S_TMP}, s{S_TMP}, 1")
    a(f"v_mov_b32 v{TMP+4}, s{S_TMP}\nv_mov_b32 v{TMP+5}, 0")
    set_exec(a, 1)
    a(f"buffer_atomic_add v{TMP+4}, v{TMP+5}, {srd(SRD_DBG)}, 0 offen sc1")
    set_exec(a, EX_ALL)
    a.label(La)
    colsum(a, lambda ct, s: ar(A_WQ + (ct*16 + s)*4, 4), 2, 16, V_CSQ)
    a(f"s_lshl_b32 s{S_T4}, s{S_HG}, 19")
    a(f"s_lshl_b32 s{S_TMP}, s{S_CG}, 2\ns_add_u32 s{S_TMP}, s{S_TMP}, s{S_WAVE}\ns_lshl_b32 s{S_TMP}, s{S_TMP}, 6\ns_add_u32 s{S_T4}, s{S_T4}, s{S_TMP}")
    for b in (1, 0):
        a(f"v_lshlrev_b32 v{TMP+6}, 2, v{V_TID}")
        a(f"buffer_load_dword v{V_XR+2*b+1}, v{TMP+6}, {srd(SRD_X)}, 0 offen offset:{1024*b}")
    a("s_waitcnt vmcnt(0)")
    for b in (1, 0):
        a(f"v_lshlrev_b32 v{V_XR+2*b}, 16, v{V_XR+2*b+1}\nv_and_b32 v{V_XR+2*b+1}, 0xffff0000, v{V_XR+2*b+1}")
    wait_arrival(a, [f"v{TMP+4}", f"v{TMP+5}", f"v{TMP+6}"])
    for b in (1, 0):
        a(f"s_mov_b32 s{S_B}, {b}\ns_mov_b32 s{S_QPH}, {b*PH}")
        a(f"v_mov_b32 v{V_XC}, v{V_XR+2*b}\nv_mov_b32 v{V_XC+1}, v{V_XR+2*b+1}")
        stage_Q_core(a, f"s{S_QPH}")
    rd = load_weights_seg64(a, SRD_WO, 1024, f"s{S_T4}", A_WO)
    rd()
    load_w12(a)
    colsum(a, lambda ct, s: vr(V_W1 + 4*s, 4), 1, 16, V_CS1)
    a(f"s_lshl_b32 s{S_TMP}, s{S_CC}, 2\ns_add_u32 s{S_TMP}, s{S_TMP}, s{S_WAVE}\ns_lshl_b32 s{S_TMP}, s{S_TMP}, 5")
    a(f"buffer_load_dwordx2 {vr(TMP,2)}, v{V_G8}, {srd(SRD_B1)}, s{S_TMP} offen")
    a(f"s_lshl_b32 s{S_TMP2}, s{S_C}, 5\nv_lshrrev_b32 v{TMP+2}, 1, v{V_L4}")
    a(f"buffer_load_ushort v{V_B2}, v{TMP+2}, {srd(SRD_B2)}, s{S_TMP2} offen")
    emit_dma_voff(a, f"v{V_DE}", f"v{V_DO}", f"v{V_LANE}", f"v{TMP+3}", f"v{TMP+4}")
    a(f"s_add_u32 s{S_TMP}, s{S_WAVE}, 252\ns_lshl_b32 s{S_TMP}, s{S_TMP}, 13\ns_lshl_b32 s{S_TMP2}, s{S_C}, 21\ns_add_u32 s{S_TMP}, s{S_TMP}, s{S_TMP2}")
    for b in (1, 0):
        for (i, (sn, add)) in enumerate(((SRD_K, 0), (SRD_K, 4096), (SRD_V, 0), (SRD_V, 4096))):
            a(f"s_add_u32 s{S_T3}, s{S_TMP}, {b*(64<<20) + add}\ns_add_u32 s{S_T4}, s{S_REG}, {(b*4+i)*4096}")
            dma_tile(a, sn, f"s{S_T3}", f"s{S_T4}", f"v{V_DE}", f"v{V_DO}")
    a("s_waitcnt vmcnt(32)")
    a(f"v_lshlrev_b32 v{V_B1}, 16, v{TMP}\nv_and_b32 v{V_B1+1}, 0xffff0000, v{TMP}\nv_lshlrev_b32 v{V_B1+2}, 16, v{TMP+1}\nv_and_b32 v{V_B1+3}, 0xffff0000, v{TMP+1}")
    a(f"v_lshlrev_b32 v{V_B2}, 16, v{V_B2}")
    a("s_waitcnt vmcnt(0)")
    for b in (1, 0):
        a(f"s_mov_b32 s{S_B}, {b}\ns_mov_b32 s{S_QPH}, {b*PH}")
        leftover_pass(a, f"s{S_QPH}")
    seq = 0
    for t, p in enumerate(order): seq |= p << (4*t)
    a(f"s_mov_b32 s{S_T}, 0")
    a.label("L_cloop")
    a(f"s_lshl_b32 s{S_TMP}, s{S_T}, 2\ns_lshr_b32 s{S_PID}, {hex(seq)}, s{S_TMP}\ns_and_b32 s{S_PID}, s{S_PID}, 3")
    a(f"s_and_b32 s{S_B}, s{S_PID}, 1\ns_lshr_b32 s{S_LAYER}, s{S_PID}, 1\ns_mul_i32 s{S_PH}, s{S_PID}, {PH}")
    restore_x(a)
    stage_O(a)
    stage_W1(a)
    stage_W2(a)
    T = BT
    Lout = a.newlabel("Lout"); Lnext = a.newlabel("Lnext")
    a(f"s_cmp_eq_u32 s{S_LAYER}, 1\ns_cbranch_scc1 {Lout}")
    Lw = a.newlabel("Lx2")
    a(f"s_cmp_lg_u32 s{S_WAVE}, 0\ns_cbranch_scc1 {Lw}")
    a(f"s_lshl_b32 s{S_TMP}, s{S_C}, 6\ns_add_u32 s{S_TMP}, s{S_TMP}, s{S_PH}\ns_add_u32 s{S_TMP}, s{S_TMP}, {WS_X2}")
    set_exec(a, 0xffff)
    a(f"buffer_store_dword v{T}, v{V_L4}, {srd(SRD_WS)}, s{S_TMP} offen sc1")
    set_exec(a, EX_ALL)
    a.label(Lw)
    a(f"s_add_u32 s{S_TMP}, s{S_PH}, {WS_X2}")
    poll(a, lambda: a(f"buffer_load_dwordx2 {vr(V_XC,2)}, v{V_T8}, {srd(SRD_WS)}, s{S_TMP} offen sc1"),
         [f"v{V_XC}", f"v{V_XC+1}"], [f"v{T}", f"v{T+1}"])
    save_x(a)
    a(f"s_add_u32 s{S_QPH}, s{S_PH}, {2*PH}")
    stage_Q_core(a, f"s{S_QPH}")
    leftover_pass(a, f"s{S_QPH}")
    a(f"s_branch {Lnext}")
    a.label(Lout)
    Lo = a.newlabel("Lo2")
    a(f"s_cmp_lg_u32 s{S_WAVE}, 0\ns_cbranch_scc1 {Lo}")
    a(f"v_cvt_pk_bf16_f32 v{T}, v{T}, v{T}")
    a(f"s_lshl_b32 s{S_TMP}, s{S_B}, 10\ns_lshl_b32 s{S_TMP2}, s{S_C}, 5\ns_add_u32 s{S_TMP}, s{S_TMP}, s{S_TMP2}")
    a(f"v_lshrrev_b32 v{T+1}, 1, v{V_L4}")
    set_exec(a, 0xffff)
    a(f"buffer_store_short v{T}, v{T+1}, {srd(SRD_OUT)}, s{S_TMP} offen")
    set_exec(a, EX_ALL)
    a.label(Lo)
    a.label(Lnext)
    a(f"s_add_u32 s{S_T}, s{S_T}, 1\ns_cmp_lt_u32 s{S_T}, 4\ns_cbranch_scc1 L_cloop")
    a("s_waitcnt vmcnt(0)\ns_endpgm")
```

```python
import sys
from common_gen import *
from gen_chain import gen_chain
from gen_attn1 import gen_attn1

HEADER = open("cdna_kernels/" + NAME + ".s.ref").read().split("; Override launch geometry")[0]

def gen(variant="v1", pol="nt"):
    a = Asm()
    kn = NAME + "_kernel"
    a.raw(HEADER.rstrip("\n"))
    a.raw("; @launch grid=(256,1,1) block=(256,1,1) lds=163840")
    a.raw('.amdgcn_target "amdgcn-amd-amdhsa--gfx950"\n.text')
    a.raw(f".globl {kn}\n.p2align 8\n.type {kn},@function\n{kn}:")
    a(f"s_cmp_ge_u32 s{S_WG}, 256\ns_cbranch_scc1 L_exit")
    a("s_load_dwordx16 s[16:31], s[0:1], 0\ns_load_dwordx8 s[32:39], s[0:1], 64\ns_load_dwordx2 s[40:41], s[0:1], 96")
    a("v_lshrrev_b32 v1, 6, v0")
    a(f"v_readfirstlane_b32 s{S_WAVE}, v1")
    a(f"s_mov_b32 s{S_BUD}, {POLL_BUDGET}")
    a("s_waitcnt lgkmcnt(0)")
    build_srd(a, SRD_WS, 40, WS_SIZE)
    build_srd(a, SRD_K, 18, 128 << 20)
    build_srd(a, SRD_V, 20, 128 << 20)
    build_srd(a, SRD_DBG, 38, 256)
    a(f"s_and_b32 s42, s{S_WG}, 7\ns_cmp_lg_u32 s42, 0\ns_cbranch_scc1 L_attn")
    build_srd(a, SRD_WQ, 22, 512*4096*2)
    build_srd(a, SRD_WO, 24, 512*4096*2)
    build_srd(a, SRD_W1, 28, 512*1792*2)
    build_srd(a, SRD_W2, 32, 512*1792*2)
    build_srd(a, SRD_X, 16, 2048)
    build_srd(a, SRD_B1, 30, 1792*2)
    build_srd(a, SRD_B2, 34, 1024)
    build_srd(a, SRD_OUT, 36, 2048)
    order = [1, 0, 3, 2]
    gen_chain(a, order)
    gen_attn1(a, order, pol)
    a.raw("L_exit:\ns_endpgm")
    a.raw('.section .rodata,"a"\n.p2align 6')
    a.raw(f".amdhsa_kernel {kn}\n  .amdhsa_next_free_vgpr 512\n  .amdhsa_next_free_sgpr 102\n  .amdhsa_accum_offset 256")
    a.raw("  .amdhsa_group_segment_fixed_size 0\n  .amdhsa_kernarg_size 104\n  .amdhsa_user_sgpr_count 2\n  .amdhsa_user_sgpr_kernarg_segment_ptr 1\n  .amdhsa_system_sgpr_workgroup_id_x 1\n.end_amdhsa_kernel")
    return a.text()

if __name__ == "__main__":
    out = sys.argv[1] if len(sys.argv) > 1 else "cdna_kernels/" + NAME + ".s"
    kw = dict(x.split("=") for x in sys.argv[2:])
    open(out, "w").write(gen(**kw))
    print("wrote", out)
```

```python
import struct, math
from asmlib import *

def f2h(x):
    return "0x%08x" % struct.unpack("<I", struct.pack("<f", x))[0]

NAME = "interleave_layers__mha_block_cached__dense_activation_gelu__decode"
PH = 0x30000
WS_Q    = 0x0
WS_PART = 0x2000
PART_REC = 640
WS_Y    = 0x2A000
WS_H    = 0x2E000
WS_X2   = 0x2F000
WS_CLR  = 4*PH
assert WS_CLR == 128*6*1024
WS_SIZE = 5*PH
SM = 147456
WREG = 36864
QSCALE = (128 ** -0.5) * math.log2(math.e)
POLL_BUDGET = 200000

S_WG = 2; S_WAVE = 3
SRD_WS = 4; SRD_K = 8; SRD_V = 12
S_MASK = 16
SRD_DBG = 44
SRD_WQ = 48; SRD_WO = 52; SRD_W1 = 56; SRD_W2 = 60; SRD_X = 64; SRD_B1 = 68; SRD_B2 = 72; SRD_OUT = 76
S_BUD = 81

def srd(b): return f"s[{b}:{b+3}]"

class Q:
    def __init__(self, a, name, cap):
        self.a = a; self.name = name; self.cap = cap; self.q = []
    def issue(self, tag): self.q.append(tag)
    def wait(self, tag):
        if tag not in self.q: return
        i = len(self.q) - 1 - self.q[::-1].index(tag)
        n = len(self.q) - 1 - i
        self.a(f"s_waitcnt {self.name}({min(n, self.cap)})")
        keep = min(n, self.cap)
        self.q = self.q[len(self.q) - keep:] if keep else []
    def waitall(self):
        self.a(f"s_waitcnt {self.name}(0)"); self.q = []

def max3_chain(a, regs, dst, op="v_max3_u32", op2="v_max_u32"):
    regs = list(regs)
    if len(regs) == 1:
        a(f"v_mov_b32 {dst}, {regs[0]}"); return
    if len(regs) == 2:
        a(f"{op2} {dst}, {regs[0]}, {regs[1]}"); return
    a(f"{op} {dst}, {regs[0]}, {regs[1]}, {regs[2]}")
    i = 3
    while i < len(regs):
        if i + 1 < len(regs):
            a(f"{op} {dst}, {dst}, {regs[i]}, {regs[i+1]}"); i += 2
        else:
            a(f"{op2} {dst}, {dst}, {regs[i]}"); i += 1

def poll(a, emit_loads, regs, vt, waitcnt="vmcnt(0)"):
    L = a.newlabel("Lpoll"); D = a.newlabel("Lpdone")
    a.label(L)
    emit_loads()
    a(f"s_waitcnt {waitcnt}")
    if len(regs) == 1:
        a(f"v_cmp_eq_u32 vcc, -1, {regs[0]}")
    else:
        h = (len(regs) + 1) // 2
        if len(regs) >= 8:
            max3_chain(a, regs[:h], vt[0]); max3_chain(a, regs[h:] , vt[1])
            a(f"v_max_u32 {vt[0]}, {vt[0]}, {vt[1]}")
        else:
            max3_chain(a, regs, vt[0])
        a(f"v_cmp_eq_u32 vcc, -1, {vt[0]}")
    a(f"s_cbranch_vccz {D}")
    a(f"s_sub_u32 s{S_BUD}, s{S_BUD}, 1")
    a(f"s_cbranch_scc0 {L}")
    a(f"s_mov_b32 s{S_BUD}, 0")
    a.label(D)

def build_srd(a, dst, ptr, nbytes):
    a(f"s_mov_b32 s{dst}, s{ptr}\ns_mov_b32 s{dst+1}, s{ptr+1}\ns_mov_b32 s{dst+2}, {hex(nbytes)}\ns_mov_b32 s{dst+3}, 0x20000")

def set_exec(a, val):
    lo = val & 0xffffffff; hi = val >> 32
    if val == (1 << 64) - 1:
        a("s_mov_b64 exec, -1")
    else:
        a(f"s_mov_b32 exec_lo, {hex(lo)}\ns_mov_b32 exec_hi, {hex(hi)}")
EX_ALL = (1 << 64) - 1
EX_N0 = 0x0001000100010001
EX_NLT8 = 0x00FF00FF00FF00FF

class BlkRegs:
    pass

def emit_lds_addrs(a, R, vlane, region_sreg, t0, t1):
    a(f"v_and_b32 {t0}, 15, {vlane}")
    a(f"v_and_b32 {t1}, 7, {vlane}\nv_lshlrev_b32 {t1}, 1, {t1}")
    a(f"v_lshrrev_b32 v{R.ka[1]}, 4, {vlane}")
    a(f"v_xor_b32 {t1}, {t1}, v{R.ka[1]}\nv_lshlrev_b32 {t1}, 4, {t1}")
    a(f"v_lshlrev_b32 {t0}, 8, {t0}\nv_add_u32 {t0}, {t0}, {t1}")
    a(f"v_add_u32 v{R.ka[0]}, {region_sreg}, {t0}")
    for s in range(1, 4):
        a(f"v_xor_b32 v{R.ka[s]}, {s<<6}, v{R.ka[0]}")
    a(f"v_lshrrev_b32 {t0}, 2, {vlane}")
    a(f"v_and_b32 {t1}, 7, {t0}\nv_lshlrev_b32 {t1}, 1, {t1}")
    a(f"v_lshlrev_b32 {t0}, 8, {t0}")
    a(f"v_bfe_u32 v{R.va[1]}, {vlane}, 1, 1")
    a(f"v_xor_b32 {t1}, {t1}, v{R.va[1]}\nv_lshlrev_b32 {t1}, 4, {t1}")
    a(f"v_add_u32 {t0}, {t0}, {t1}")
    a(f"v_and_b32 {t1}, 1, {vlane}\nv_lshlrev_b32 {t1}, 3, {t1}\nv_add_u32 {t0}, {t0}, {t1}")
    a(f"v_add_u32 v{R.va[0]}, {region_sreg}, {t0}")
    for d in range(1, 8):
        a(f"v_xor_b32 v{R.va[d]}, {d<<5}, v{R.va[0]}")

def emit_dma_voff(a, vde, vdo, vlane, t0, t1):
    a(f"v_lshrrev_b32 {t0}, 4, {vlane}\nv_lshlrev_b32 {t1}, 1, {t0}")
    a(f"v_and_b32 {vde}, 15, {vlane}\nv_xor_b32 {vde}, {vde}, {t1}\nv_lshlrev_b32 {vde}, 4, {vde}")
    a(f"v_lshlrev_b32 {t0}, 8, {t0}\nv_add_u32 {vde}, {vde}, {t0}")
    a(f"v_xor_b32 {vdo}, 0x80, {vde}")

def dma_tile(a, srdn, soff, m0val, vde, vdo, pol="nt"):
    a(f"s_mov_b32 m0, {m0val}")
    for t in range(4):
        a(f"buffer_load_dwordx4 {vde if t % 2 == 0 else vdo}, {srd(srdn)}, {soff} offen offset:{t*1024} {pol} lds")

def emit_masks(a):
    for d in range(8):
        m = EX_N0 << d
        a(f"s_mov_b32 s{S_MASK+2*d}, {hex(m & 0xffffffff)}\ns_mov_b32 s{S_MASK+2*d+1}, {hex(m >> 32)}")

def emit_block(a, R, kt, vt, after_k=None, before_v=None, after_v=None):
    lq = Q(a, "lgkmcnt", 15)
    for T in range(2):
        for s in range(4):
            r = R.T + (T*4 + s)*4
            a(f"ds_read_b128 {vr(r,4)}, v{R.ka[s]} offset:{kt[T]}"); lq.issue(("k", T, s))
    for T in range(2):
        for s in range(4):
            r = R.T + (T*4 + s)*4
            lq.wait(("k", T, s))
            C = "0" if s == 0 else vr(R.S + 4*T, 4)
            a(f"v_mfma_f32_16x16x32_bf16 {vr(R.S+4*T,4)}, {vr(r,4)}, {vr(R.q+4*s,4)}, {C}")
    if after_k: after_k()
    if before_v: before_v()
    for d in range(8):
        r = R.T + 4*d
        a(f"ds_read_b64_tr_b16 {vr(r,2)}, v{R.va[d]} offset:{vt[0]}"); lq.issue(("v", d, 0))
        a(f"ds_read_b64_tr_b16 {vr(r+2,2)}, v{R.va[d]} offset:{vt[1]}"); lq.issue(("v", d, 1))
    S = R.S; t = R.t
    a(f"v_max3_f32 v{t}, v{S}, v{S+1}, v{S+2}")
    a(f"v_max3_f32 v{t+1}, v{S+4}, v{S+5}, v{S+6}")
    a(f"v_max3_f32 v{t}, v{t}, v{S+3}, v{S+7}")
    a(f"v_max3_f32 v{t}, v{t}, v{t+1}, v{R.m}")
    for sw in ("v_permlane16_swap_b32", "v_permlane32_swap_b32"):
        a(f"v_mov_b32 v{t+1}, v{t}")
        a(f"{sw} v{t}, v{t+1}")
        a(f"v_max_f32 v{t}, v{t}, v{t+1}")
    a(f"v_sub_f32 v{t+1}, v{R.m}, v{t}")
    a(f"v_exp_f32 v{t+1}, v{t+1}")
    a(f"v_mov_b32 v{R.m}, v{t}")
    for k in range(8):
        a(f"v_sub_f32 v{S+k}, v{S+k}, v{t}")
    for k in range(8):
        a(f"v_exp_f32 v{S+k}, v{S+k}")
    a(f"v_mul_f32 v{R.l}, v{R.l}, v{t+1}")
    for k in range(4):
        a(f"v_mul_f32 v{R.acc+k}, v{R.acc+k}, v{t+1}")
    a(f"v_add_f32 v{t+2}, v{S}, v{S+1}\nv_add_f32 v{t+3}, v{S+2}, v{S+3}")
    a(f"v_add_f32 v{t+2}, v{t+2}, v{S+4}\nv_add_f32 v{t+3}, v{t+3}, v{S+5}")
    a(f"v_add_f32 v{t+2}, v{t+2}, v{S+6}\nv_add_f32 v{t+3}, v{t+3}, v{S+7}")
    a(f"v_add_f32 v{R.l}, v{R.l}, v{t+2}\nv_add_f32 v{R.l}, v{R.l}, v{t+3}")
    for k in range(4):
        a(f"v_cvt_pk_bf16_f32 v{S+k}, v{S+2*k}, v{S+2*k+1}")
    def mask(d):
        b = R.bm + 4*(d & 1)
        for k in range(4):
            a(f"v_cndmask_b32_e64 v{b+k}, 0, v{S+k}, s[{S_MASK+2*d}:{S_MASK+2*d+1}]")
    mask(0)
    for d in range(8):
        if d + 1 < 8: mask(d + 1)
        lq.wait(("v", d, 1))
        b = R.bm + 4*(d & 1)
        a(f"v_mfma_f32_16x16x32_bf16 {vr(R.acc,4)}, {vr(R.T+4*d,4)}, {vr(b,4)}, {vr(R.acc,4)}")
    if after_v: after_v()

def emit_pass_init(a, R):
    a(f"v_mov_b32 v{R.m}, 0xff800000\nv_mov_b32 v{R.l}, 0")
    for k in range(4): a(f"v_mov_b32 v{R.acc+k}, 0")

def emit_partial_write(a, R, vlane, comb_addr_sreg, tA):
    t = R.t
    for sw in ("v_permlane16_swap_b32", "v_permlane32_swap_b32"):
        a(f"v_mov_b32 v{t+1}, v{R.l}")
        a(f"{sw} v{R.l}, v{t+1}")
        a(f"v_add_f32 v{R.l}, v{R.l}, v{t+1}")
    a(f"v_and_b32 v{tA}, 15, {vlane}\nv_lshlrev_b32 v{tA}, 6, v{tA}")
    a(f"v_lshrrev_b32 v{tA+1}, 4, {vlane}\nv_lshlrev_b32 v{tA+1}, 4, v{tA+1}")
    a(f"v_add_u32 v{tA}, v{tA}, v{tA+1}\nv_add_u32 v{tA}, {comb_addr_sreg}, v{tA}")
    a(f"v_mov_b32 v{tA+1}, {comb_addr_sreg}")
    set_exec(a, EX_NLT8)
    a(f"ds_write_b128 v{tA}, {vr(R.acc,4)}")
    set_exec(a, 1)
    assert R.l == R.m + 1
    a(f"ds_write_b64 v{tA+1}, {vr(R.m,2)} offset:512")
    set_exec(a, EX_ALL)

def emit_combine_publish(a, vlane, comb0_sreg, stride, T, soff_rec):
    O = T; ML = T + 16; M = T + 24; E = T + 25; A = T + 30; AD = T + 29
    lq = Q(a, "lgkmcnt", 15)
    a(f"v_and_b32 v{AD}, 31, {vlane}\nv_lshlrev_b32 v{AD}, 4, v{AD}\nv_add_u32 v{AD}, {comb0_sreg}, v{AD}")
    a(f"v_mov_b32 v{A}, {comb0_sreg}")
    for w in range(4):
        a(f"ds_read_b64 {vr(ML+2*w,2)}, v{A} offset:{w*stride+512}"); lq.issue(("ml", w))
    for w in range(4):
        a(f"ds_read_b128 {vr(O+4*w,4)}, v{AD} offset:{w*stride}"); lq.issue(("o", w))
    lq.wait(("ml", 3))
    a(f"v_max3_f32 v{M}, v{ML}, v{ML+2}, v{ML+4}\nv_max_f32 v{M}, v{M}, v{ML+6}")
    for w in range(4): a(f"v_sub_f32 v{E+w}, v{ML+2*w}, v{M}")
    for w in range(4): a(f"v_exp_f32 v{E+w}, v{E+w}")
    a(f"v_mul_f32 v{A+1}, v{E}, v{ML+1}")
    for w in range(1, 4): a(f"v_fmac_f32 v{A+1}, v{E+w}, v{ML+2*w+1}")
    lq.wait(("o", 3))
    for k in range(4):
        a(f"v_mul_f32 v{O+k}, v{E}, v{O+k}")
    for w in range(1, 4):
        for k in range(4):
            a(f"v_fmac_f32 v{O+k}, v{E+w}, v{O+4*w+k}")
    a(f"s_mov_b32 s32, 0\ns_mov_b32 s33, 1")
    a(f"v_cndmask_b32_e64 v{O}, v{O}, v{M}, s[32:33]")
    a(f"v_cndmask_b32_e64 v{O+1}, v{O+1}, v{A+1}, s[32:33]")
    a(f"v_cndmask_b32_e64 v{O+2}, v{O+2}, 0, s[32:33]")
    a(f"v_cndmask_b32_e64 v{O+3}, v{O+3}, 0, s[32:33]")
    a(f"v_lshlrev_b32 v{AD}, 4, {vlane}")
    set_exec(a, 0x1FFFFFFFF)
    a(f"buffer_store_dwordx4 {vr(O,4)}, v{AD}, {srd(SRD_WS)}, {soff_rec} offen sc1")
    set_exec(a, EX_ALL)


PROF_BASE = 0x100000
S_PROF = 99
class Prof:
    on = False
    @staticmethod
    def init(a):
        if not Prof.on: return
        a(f"s_lshl_b32 s{S_PROF}, s{S_WG}, 2\ns_add_u32 s{S_PROF}, s{S_PROF}, s{S_WAVE}\ns_lshl_b32 s{S_PROF}, s{S_PROF}, 8\ns_add_u32 s{S_PROF}, s{S_PROF}, {PROF_BASE}")
        a(f"s_getreg_b32 s97, hwreg(HW_REG_XCC_ID)\ns_and_b32 s97, s97, 15\ns_getreg_b32 s98, hwreg(HW_REG_HW_ID)\nv_mov_b32 v47, s97\nv_mov_b32 v46, s98")
        a(f"buffer_store_dword v47, off, {srd(SRD_WS)}, s{S_PROF} offset:252\nbuffer_store_dword v46, off, {srd(SRD_WS)}, s{S_PROF} offset:248")
    @staticmethod
    def mark(a, idx, vt, sidx=None, mul=0):
        if not Prof.on: return
        a("s_memrealtime s[100:101]")
        if sidx is not None:
            a(f"s_mul_i32 s97, s{sidx}, {4*mul}\ns_add_u32 s97, s97, s{S_PROF}")
            so = "s97"
        else:
            so = f"s{S_PROF}"
        a("s_waitcnt lgkmcnt(0)")
        a(f"v_mov_b32 {vt}, s100")
        a(f"buffer_store_dword {vt}, off, {srd(SRD_WS)}, {so} offset:{idx*4}")
```

```python
from common_gen import *
from gen_chain import wait_arrival
S_HEAD = 80; S_J = 82; S_T = 83; S_I = 84; S_PF = 85; S_PFI = 86; S_PFB = 87; S_TMP = 88; S_TMP2 = 89
S_REG = 90; S_BASE = 91; S_SLOT = 92; S_PID = 93; S_WIDX = 94; S_T3 = 95; S_PFS = 96; S_PFN = 97; S_OFF = 98
QBUF = 0; CNT = 4096; COMB = 4352; CSTR = 544
class AR(BlkRegs):
    ka = [2, 3, 4, 5]; va = [6, 7, 8, 9, 10, 11, 12, 13]
    q = 16; S = 32; acc = 40; m = 44; l = 45; t = 46; bm = 52; T = 64
V_LANE = 1; V_DE = 14; V_DO = 15; V_L4 = 50; V_G16 = 51; V_X = 60

def pf_advance(a):
    a(f"s_mul_i32 s{S_OFF}, s{S_PFI}, {28*8192}\ns_add_u32 s{S_OFF}, s{S_OFF}, s{S_BASE}\ns_add_u32 s{S_OFF}, s{S_OFF}, s{S_PFB}")
    a(f"s_add_u32 s{S_PFI}, s{S_PFI}, 1\ns_cmp_eq_u32 s{S_PFI}, 9\ns_cselect_b32 s{S_PFI}, 0, s{S_PFI}")
    a(f"s_add_u32 s{S_PFN}, s{S_PFN}, 1\ns_cmp_eq_u32 s{S_PFN}, 9\ns_cselect_b32 s{S_PFN}, 0, s{S_PFN}")
    a(f"s_cselect_b32 s{S_TMP}, {64<<20}, 0\ns_xor_b32 s{S_PFB}, s{S_PFB}, s{S_TMP}")

def gen_attn1(a, order, pol="nt", polv=None):
    R = AR
    if polv is None: polv = pol
    P = lambda sn: pol if sn == SRD_K else polv
    a.label("L_attn")
    a(f"s_lshr_b32 s{S_HEAD}, s{S_WG}, 3\ns_and_b32 s{S_WIDX}, s{S_WG}, 7\ns_sub_u32 s{S_WIDX}, s{S_WIDX}, 1")
    a(f"s_lshl_b32 s{S_J}, s{S_WIDX}, 2\ns_add_u32 s{S_J}, s{S_J}, s{S_WAVE}")
    a(f"s_lshl_b32 s{S_REG}, s{S_WAVE}, 15")
    a(f"v_and_b32 v{V_LANE}, 63, v0")
    emit_dma_voff(a, f"v{V_DE}", f"v{V_DO}", f"v{V_LANE}", f"v{R.T}", f"v{R.T+1}")
    a(f"s_lshl_b32 s{S_BASE}, s{S_HEAD}, 21\ns_lshl_b32 s{S_TMP}, s{S_J}, 13\ns_add_u32 s{S_BASE}, s{S_BASE}, s{S_TMP}")
    a(f"s_add_u32 s{S_PFI}, s{S_HEAD}, s{S_J}\ns_mul_i32 s{S_TMP}, s{S_PFI}, 7282\ns_lshr_b32 s{S_TMP}, s{S_TMP}, 16\ns_mul_i32 s{S_TMP}, s{S_TMP}, 9\ns_sub_u32 s{S_PFI}, s{S_PFI}, s{S_TMP}")
    b0 = order[0] & 1
    a(f"s_mov_b32 s{S_PFB}, {b0*(64<<20)}\ns_mov_b32 s{S_PFN}, 0")
    for slot in range(2):
        pf_advance(a)
        for (i, (sn, add)) in enumerate(((SRD_K, 0), (SRD_K, 4096), (SRD_V, 0), (SRD_V, 4096))):
            a(f"s_add_u32 s{S_TMP}, s{S_OFF}, {add}\ns_add_u32 s{S_TMP2}, s{S_REG}, {slot*16384 + i*4096}")
            dma_tile(a, sn, f"s{S_TMP}", f"s{S_TMP2}", f"v{V_DE}", f"v{V_DO}", P(sn))
    emit_lds_addrs(a, R, f"v{V_LANE}", f"s{S_REG}", f"v{R.T}", f"v{R.T+1}")
    emit_masks(a)
    a(f"v_lshlrev_b32 v{V_L4}, 2, v{V_LANE}\nv_lshrrev_b32 v{V_G16}, 4, v{V_LANE}\nv_lshlrev_b32 v{V_G16}, 4, v{V_G16}")
    a(f"v_mov_b32 v{V_X}, {SM+CNT}\nv_mov_b32 v{V_X+1}, 0\nv_add_u32 v{V_X}, v{V_X}, v{V_L4}")
    set_exec(a, 0xf)
    a(f"ds_write_b32 v{V_X}, v{V_X+1}")
    set_exec(a, EX_ALL)
    a("s_waitcnt lgkmcnt(0)\ns_barrier")
    Prof.mark(a, 1, "v63")
    wait_arrival(a, [f"v{V_X}", f"v{V_X+1}", f"v{V_X+2}"])
    Prof.mark(a, 2, "v63")
    seq = 0
    for t, p in enumerate(order): seq |= p << (4*t)
    a(f"s_mov_b32 s{S_T}, 0\ns_mov_b32 s{S_SLOT}, 0")
    a.label("L_aphase")
    a(f"s_lshl_b32 s{S_TMP}, s{S_T}, 2\ns_lshr_b32 s{S_PID}, {hex(seq)}, s{S_TMP}\ns_and_b32 s{S_PID}, s{S_PID}, 3")
    a(f"s_mul_i32 s{S_TMP}, s{S_PID}, {PH}\ns_lshl_b32 s{S_TMP2}, s{S_HEAD}, 8\ns_add_u32 s{S_TMP}, s{S_TMP}, s{S_TMP2}")
    poll(a, lambda: a(f"buffer_load_dword v{V_X}, v{V_L4}, {srd(SRD_WS)}, s{S_TMP} offen offset:{WS_Q} sc1"), [f"v{V_X}"], [])
    Prof.mark(a, 8, "v63", S_T, 8)
    a(f"s_lshl_b32 s{S_TMP}, s{S_WAVE}, 2\ns_add_u32 s{S_TMP}, s{S_TMP}, s{S_PID}\ns_lshl_b32 s{S_TMP}, s{S_TMP}, 8\ns_add_u32 s{S_TMP}, s{S_TMP}, {SM+QBUF}")
    a(f"v_add_u32 v{V_X+1}, s{S_TMP}, v{V_L4}\nv_add_u32 v{V_X+2}, s{S_TMP}, v{V_G16}")
    a(f"ds_write_b32 v{V_X+1}, v{V_X}\ns_waitcnt lgkmcnt(0)")
    for s in range(4):
        a(f"ds_read_b128 {vr(R.q+4*s,4)}, v{V_X+2} offset:{64*s}")
    emit_pass_init(a, R)
    a("s_waitcnt lgkmcnt(0)")
    a(f"s_mov_b32 s{S_I}, 0")
    a.label("L_ablk")
    a(f"s_mul_i32 s{S_PFS}, s{S_T}, 9\ns_add_u32 s{S_PFS}, s{S_PFS}, s{S_I}\ns_add_u32 s{S_PFS}, s{S_PFS}, 2")
    a("s_waitcnt vmcnt(24)")
    Lk = a.newlabel("Lk8")
    a(f"s_cmp_lg_u32 s{S_PFS}, 37\ns_cbranch_scc1 {Lk}\ns_waitcnt vmcnt(8)")
    a.label(Lk)
    def after_k():
        L = a.newlabel("Lnk"); E = a.newlabel("Lnke")
        a(f"s_cmp_ge_u32 s{S_PFS}, 36\ns_cbranch_scc1 {L}")
        pf_advance(a)
        for i in range(2):
            a(f"s_add_u32 s{S_TMP}, s{S_OFF}, {i*4096}\ns_add_u32 s{S_TMP2}, s{S_REG}, s{S_SLOT}\ns_add_u32 s{S_TMP2}, s{S_TMP2}, {i*4096}")
            dma_tile(a, SRD_K, f"s{S_TMP}", f"s{S_TMP2}", f"v{V_DE}", f"v{V_DO}", pol)
        a(f"s_waitcnt vmcnt(24)\ns_branch {E}")
        a.label(L)
        a(f"s_cmp_eq_u32 s{S_PFS}, 37\ns_cbranch_scc1 {L}z\ns_waitcnt vmcnt(16)\ns_branch {E}")
        a.label(L + "z")
        a("s_waitcnt vmcnt(0)")
        a.label(E)
    def after_v():
        L = a.newlabel("Lnv")
        a(f"s_cmp_ge_u32 s{S_PFS}, 36\ns_cbranch_scc1 {L}")
        for i in range(2):
            a(f"s_add_u32 s{S_TMP}, s{S_OFF}, {i*4096}\ns_add_u32 s{S_TMP2}, s{S_REG}, s{S_SLOT}\ns_add_u32 s{S_TMP2}, s{S_TMP2}, {8192 + i*4096}")
            dma_tile(a, SRD_V, f"s{S_TMP}", f"s{S_TMP2}", f"v{V_DE}", f"v{V_DO}", polv)
        a.label(L)
    emit_block(a, R, (0, 4096), (8192, 12288), after_k=after_k, after_v=after_v)
    a(f"s_xor_b32 s{S_SLOT}, s{S_SLOT}, 16384")
    for r in R.ka + R.va: a(f"v_xor_b32 v{r}, 0x4000, v{r}")
    a(f"s_add_u32 s{S_I}, s{S_I}, 1\ns_cmp_lt_u32 s{S_I}, 9\ns_cbranch_scc1 L_ablk")
    Prof.mark(a, 9, "v63", S_T, 8)
    a(f"s_lshl_b32 s{S_TMP}, s{S_PID}, 2\ns_add_u32 s{S_TMP2}, s{S_TMP}, s{S_WAVE}\ns_mul_i32 s{S_TMP2}, s{S_TMP2}, {CSTR}\ns_add_u32 s{S_TMP2}, s{S_TMP2}, {SM+COMB}")
    emit_partial_write(a, R, f"v{V_LANE}", f"s{S_TMP2}", R.T)
    a(f"s_add_u32 s{S_TMP}, s{S_TMP}, {SM+CNT}\nv_mov_b32 v{V_X}, s{S_TMP}\nv_mov_b32 v{V_X+1}, 1")
    a("s_waitcnt lgkmcnt(0)")
    set_exec(a, 1)
    a(f"ds_add_rtn_u32 v{V_X+2}, v{V_X}, v{V_X+1}\ns_waitcnt lgkmcnt(0)")
    a(f"v_readfirstlane_b32 s{S_TMP}, v{V_X+2}")
    set_exec(a, EX_ALL)
    Ls = a.newlabel("Lnopub")
    a(f"s_cmp_lg_u32 s{S_TMP}, 3\ns_cbranch_scc1 {Ls}")
    a(f"s_mul_i32 s{S_TMP}, s{S_PID}, {4*CSTR}\ns_add_u32 s{S_TMP}, s{S_TMP}, {SM+COMB}")
    a(f"s_lshl_b32 s{S_TMP2}, s{S_HEAD}, 3\ns_add_u32 s{S_TMP2}, s{S_TMP2}, s{S_WIDX}\ns_mul_i32 s{S_TMP2}, s{S_TMP2}, {PART_REC}")
    a(f"s_mul_i32 s{S_T3}, s{S_PID}, {PH}\ns_add_u32 s{S_TMP2}, s{S_TMP2}, s{S_T3}\ns_add_u32 s{S_TMP2}, s{S_TMP2}, {WS_PART}")
    emit_combine_publish(a, f"v{V_LANE}", f"s{S_TMP}", CSTR, R.T, f"s{S_TMP2}")
    a.label(Ls)
    Prof.mark(a, 10, "v63", S_T, 8)
    a(f"s_add_u32 s{S_T}, s{S_T}, 1\ns_cmp_lt_u32 s{S_T}, 4\ns_cbranch_scc1 L_aphase")
    a("s_waitcnt vmcnt(0)\ns_endpgm")
```

```python
from common_gen import *

XB_O = 0; XB_1 = 1024; XB_Q = 2048; X1F = 3072; STAT1 = 5120; STATQ = 5152; RED = 5184
QB = 5440; HB = 6144; CCOMB = 10240; CSTR = 544
S_C = 80; S_T = 82; S_PID = 83; S_B = 84; S_LAYER = 85; S_PH = 86; S_TMP = 87; S_TMP2 = 88; S_REG = 89
S_HG = 90; S_CG = 91; S_T3 = 92; S_T4 = 93; S_QPH = 94; S_DRY = 95; S_CC = 96
V_TID = 0; V_LANE = 1; V_B = 2; V_T4 = 3; V_T8 = 4; V_X1W = 5
V_XR = 6
V_CSQ = 10
V_CS1 = 18
V_B1 = 22
V_B2 = 26
V_PO = 27; V_PML = 28
V_G16 = 29
V_XC = 30
V_G8 = 32
V_HBW = 33; V_HBR = 34; V_RDW = 35; V_RDR = 36; V_L16 = 37; V_XBO = 38; V_L4 = 39
class CR(BlkRegs):
    ka = [40, 41, 42, 43]; va = [44, 45, 46, 47, 48, 49, 50, 51]
    q = 52; S = 68; acc = 76; m = 80; l = 81; t = 82; bm = 88; T = 96
V_DE = 86; V_DO = 87
TMP = 96
BT = 64
A_WQ = 0; A_WO = 128; V_W1 = 192; V_W2 = 136
MF = "v_mfma_f32_16x16x32_bf16"

def load_weights_seg64(a, srdn, rowstride, s_off0, abase):
    t0, t1 = f"v{TMP}", f"v{TMP+1}"
    a(f"v_lshrrev_b32 {t0}, 2, v{V_LANE}\nv_mul_u32_u24 {t0}, {rowstride}, {t0}")
    a(f"v_and_b32 {t1}, 3, v{V_LANE}\nv_lshlrev_b32 {t1}, 4, {t1}\nv_add_u32 {t0}, {t0}, {t1}")
    a(f"s_mov_b32 s{S_TMP}, s{S_REG}\ns_mov_b32 s{S_TMP2}, {s_off0}\ns_mov_b32 s{S_T3}, 32")
    L = a.newlabel("Lw64")
    a.label(L)
    a(f"s_mov_b32 m0, s{S_TMP}")
    a(f"buffer_load_dwordx4 {t0}, {srd(srdn)}, s{S_TMP2} offen lds")
    a(f"s_add_u32 s{S_TMP}, s{S_TMP}, 1024\ns_add_u32 s{S_TMP2}, s{S_TMP2}, {16*rowstride}")
    a(f"s_sub_u32 s{S_T3}, s{S_T3}, 1\ns_cmp_lg_u32 s{S_T3}, 0\ns_cbranch_scc1 {L}")
    return lambda: read_weights_seg64(a, abase)

def read_weights_seg64(a, abase):
    t0, t1 = f"v{TMP}", f"v{TMP+1}"
    a(f"v_lshrrev_b32 {t0}, 4, v{V_LANE}\nv_lshlrev_b32 {t0}, 3, {t0}")
    a(f"v_bfe_u32 {t1}, v{V_LANE}, 2, 2\nv_add_u32 {t0}, {t0}, {t1}\nv_lshlrev_b32 {t0}, 6, {t0}")
    a(f"v_and_b32 {t1}, 3, v{V_LANE}\nv_lshlrev_b32 {t1}, 3, {t1}\nv_add_u32 {t0}, {t0}, {t1}")
    a(f"v_add_u32 {t0}, s{S_REG}, {t0}")
    a("s_waitcnt vmcnt(0)")
    for ct in range(2):
        for s in range(16):
            for h in range(2):
                r = abase + (ct*16 + s)*4 + 2*h
                a(f"ds_read_b64_tr_b16 {ar(r,2)}, {t0} offset:{s*2048 + h*256 + ct*32}")
    a("s_waitcnt lgkmcnt(0)")

def load_w12(a):
    t0, t1, t2 = f"v{TMP}", f"v{TMP+1}", f"v{TMP+2}"
    a(f"v_lshrrev_b32 {t0}, 1, v{V_LANE}\nv_mul_u32_u24 {t2}, 1024, {t0}\nv_mul_u32_u24 {t0}, 3584, {t0}")
    a(f"v_and_b32 {t1}, 1, v{V_LANE}\nv_lshlrev_b32 {t1}, 4, {t1}\nv_add_u32 {t0}, {t0}, {t1}\nv_add_u32 {t2}, {t2}, {t1}")
    a(f"s_lshl_b32 s{S_TMP2}, s{S_CC}, 2\ns_add_u32 s{S_TMP2}, s{S_TMP2}, s{S_WAVE}\ns_lshl_b32 s{S_TMP2}, s{S_TMP2}, 5")
    a(f"s_mov_b32 s{S_TMP}, s{S_REG}\ns_mov_b32 s{S_T3}, 16")
    L = a.newlabel("Lw1"); a.label(L)
    a(f"s_mov_b32 m0, s{S_TMP}")
    a(f"buffer_load_dwordx4 {t0}, {srd(SRD_W1)}, s{S_TMP2} offen lds")
    a(f"s_add_u32 s{S_TMP}, s{S_TMP}, 1024\ns_add_u32 s{S_TMP2}, s{S_TMP2}, {32*3584}")
    a(f"s_sub_u32 s{S_T3}, s{S_T3}, 1\ns_cmp_lg_u32 s{S_T3}, 0\ns_cbranch_scc1 {L}")
    a(f"s_mul_i32 s{S_TMP2}, s{S_WAVE}, {448*1024}\ns_lshl_b32 s{S_T4}, s{S_C}, 5\ns_add_u32 s{S_TMP2}, s{S_TMP2}, s{S_T4}")
    a(f"s_mov_b32 s{S_T3}, 14")
    L = a.newlabel("Lw2"); a.label(L)
    a(f"s_mov_b32 m0, s{S_TMP}")
    a(f"buffer_load_dwordx4 {t2}, {srd(SRD_W2)}, s{S_TMP2} offen lds")
    a(f"s_add_u32 s{S_TMP}, s{S_TMP}, 1024\ns_add_u32 s{S_TMP2}, s{S_TMP2}, {32*1024}")
    a(f"s_sub_u32 s{S_T3}, s{S_T3}, 1\ns_cmp_lg_u32 s{S_T3}, 0\ns_cbranch_scc1 {L}")
    a(f"v_lshrrev_b32 {t0}, 4, v{V_LANE}\nv_lshlrev_b32 {t0}, 3, {t0}")
    a(f"v_bfe_u32 {t1}, v{V_LANE}, 2, 2\nv_add_u32 {t0}, {t0}, {t1}\nv_lshlrev_b32 {t0}, 5, {t0}")
    a(f"v_and_b32 {t1}, 3, v{V_LANE}\nv_lshlrev_b32 {t1}, 3, {t1}\nv_add_u32 {t0}, {t0}, {t1}")
    a(f"v_add_u32 {t0}, s{S_REG}, {t0}")
    a("s_waitcnt vmcnt(0)")
    for s in range(16):
        for h in range(2):
            a(f"ds_read_b64_tr_b16 {vr(V_W1 + s*4 + 2*h,2)}, {t0} offset:{s*1024 + h*128}")
    for s in range(14):
        for h in range(2):
            a(f"ds_read_b64_tr_b16 {vr(V_W2 + s*4 + 2*h,2)}, {t0} offset:{16384 + s*1024 + h*128}")
    a("s_waitcnt lgkmcnt(0)")

def colsum(a, A, ntile, nstep, dst):
    ones = TMP
    for k in range(4): a(f"v_mov_b32 v{ones+k}, 0x3f803f80")
    for s in range(nstep):
        for ct in range(ntile):
            C = "0" if s == 0 else vr(dst + 4*ct, 4)
            a(f"{MF} {vr(dst+4*ct,4)}, {A(ct,s)}, {vr(ones,4)}, {C}")

def gemv(a, lq, A, ntile, nstep, D, baddr, boff, pre=None, shadow=None):
    shadow = list(shadow or [])
    ahead = min(nstep, 13)
    for s in range(ahead):
        a(f"ds_read_b128 {vr(BT+4*s,4)}, {baddr} offset:{boff + 64*s}"); lq.issue(("b", s))
    if pre: pre()
    for s in range(nstep):
        if s + ahead < nstep:
            sn = s + ahead
            a(f"ds_read_b128 {vr(BT+4*sn,4)}, {baddr} offset:{boff + 64*sn}"); lq.issue(("b", sn))
        lq.wait(("b", s))
        for ct in range(ntile):
            C = "0" if s == 0 else vr(D + 4*ct, 4)
            a(f"{MF} {vr(D+4*ct,4)}, {A(ct,s)}, {vr(BT+4*s,4)}, {C}")
            for _ in range(2):
                if shadow: a(shadow.pop(0))
    for l in shadow: a(l)

def x_to_lds_stats(a, xb, stat, f32copy):
    t = TMP
    x0, x1 = f"v{V_XC}", f"v{V_XC+1}"
    a(f"v_cvt_pk_bf16_f32 v{t+2}, {x0}, {x1}")
    a(f"v_add_f32 v{t}, {x0}, {x1}\nv_mul_f32 v{t+1}, {x0}, {x0}")
    a(f"ds_write_b32 v{V_T4}, v{t+2} offset:{xb}")
    a(f"v_fmac_f32 v{t+1}, {x1}, {x1}")
    if f32copy:
        a(f"ds_write_b64 v{V_X1W}, {vr(V_XC,2)} offset:{X1F}")
    for k in (1, 2, 4, 8):
        a(f"v_add_f32_dpp v{t}, v{t}, v{t} row_shr:{k} row_mask:0xf bank_mask:0xf")
        a(f"v_add_f32_dpp v{t+1}, v{t+1}, v{t+1} row_shr:{k} row_mask:0xf bank_mask:0xf")
    for (bc, rm) in ((15, "0xa"), (31, "0xc")):
        a(f"v_add_f32_dpp v{t}, v{t}, v{t} row_bcast:{bc} row_mask:{rm} bank_mask:0xf")
        a(f"v_add_f32_dpp v{t+1}, v{t+1}, v{t+1} row_bcast:{bc} row_mask:{rm} bank_mask:0xf")
    a(f"s_lshl_b32 s{S_TMP}, s{S_WAVE}, 3\ns_add_u32 s{S_TMP}, s{S_TMP}, {SM + stat}\nv_mov_b32 v{t+2}, s{S_TMP}")
    set_exec(a, 1 << 63)
    a(f"ds_write_b64 v{t+2}, {vr(t,2)}")
    set_exec(a, EX_ALL)
    a("s_waitcnt lgkmcnt(0)\ns_barrier")

V_MEAN = 132; V_RSTD = 133
def stat_reads(a, lq, stat):
    st = 128
    a(f"v_mov_b32 v{st+7}, {SM}")
    a(f"ds_read_b128 {vr(st-0,4)}, v{st+7} offset:{stat}"); lq.issue("st0")
    a(f"ds_read_b128 {vr(60,4)}, v{st+7} offset:{stat+16}"); lq.issue("st1")
def stat_shadow():
    st = 128
    return [
        f"v_add_f32 v128, v128, v130", f"v_add_f32 v129, v129, v131",
        f"v_add_f32 v60, v60, v62", f"v_add_f32 v61, v61, v63",
        f"v_add_f32 v128, v128, v60", f"v_add_f32 v129, v129, v61",
        f"v_mul_f32 v{V_MEAN}, {f2h(1/512)}, v128", f"v_mul_f32 v129, {f2h(1/512)}, v129",
        f"v_fma_f32 v129, -v{V_MEAN}, v{V_MEAN}, v129", f"v_add_f32 v129, {f2h(1e-5)}, v129",
        f"v_max_f32 v129, {f2h(1e-5)}, v129",
        f"v_rsq_f32 v{V_RSTD}, v129",
    ]

def stage_O(a):
    a.comment("---- stage O: combine partials, o @ wo")
    T = BT
    O = T; ML = T + 16; M = T + 24; E = T + 25; Lr = T + 29; t = T + 30
    a(f"s_lshl_b32 s{S_TMP}, s{S_HG}, 2\ns_add_u32 s{S_TMP}, s{S_TMP}, s{S_WAVE}\ns_mul_i32 s{S_TMP}, s{S_TMP}, {8*PART_REC}")
    a(f"s_add_u32 s{S_TMP}, s{S_TMP}, s{S_PH}\ns_add_u32 s{S_TMP}, s{S_TMP}, {WS_PART}")
    def loads():
        for u in range(4):
            a(f"buffer_load_dwordx4 {vr(O+4*u,4)}, v{V_PO}, {srd(SRD_WS)}, s{S_TMP} offen offset:{u*PART_REC} sc1")
        for u in range(4):
            a(f"buffer_load_dwordx2 {vr(ML+2*u,2)}, v{V_PML}, {srd(SRD_WS)}, s{S_TMP} offen offset:{u*PART_REC} sc1")
    poll(a, loads, [f"v{O+k}" for k in range(24)], [f"v{t}", f"v{t+1}"])
    Prof.mark(a, 9, "v127", S_T, 8)
    a(f"v_max3_f32 v{M}, v{ML}, v{ML+2}, v{ML+4}\nv_max_f32 v{M}, v{M}, v{ML+6}")
    a(f"v_mov_b32 v{t}, v{M}\nv_permlane32_swap_b32 v{M}, v{t}\nv_max_f32 v{M}, v{M}, v{t}")
    for u in range(4): a(f"v_sub_f32 v{E+u}, v{ML+2*u}, v{M}")
    for u in range(4): a(f"v_exp_f32 v{E+u}, v{E+u}")
    a(f"v_mul_f32 v{Lr}, v{E}, v{ML+1}")
    for k in range(4): a(f"v_mul_f32 v{O+k}, v{E}, v{O+k}")
    for u in range(1, 4):
        a(f"v_fmac_f32 v{Lr}, v{E+u}, v{ML+2*u+1}")
        for k in range(4): a(f"v_fmac_f32 v{O+k}, v{E+u}, v{O+4*u+k}")
    a(f"v_mov_b32 v{t}, v{Lr}")
    a(f"v_permlane32_swap_b32 v{O}, v{O+2}")
    a(f"v_permlane32_swap_b32 v{Lr}, v{t}")
    a(f"v_permlane32_swap_b32 v{O+1}, v{O+3}")
    a(f"v_add_f32 v{Lr}, v{Lr}, v{t}\nv_add_f32 v{O}, v{O}, v{O+2}\nv_rcp_f32 v{Lr}, v{Lr}\nv_add_f32 v{O+1}, v{O+1}, v{O+3}")
    a(f"v_mul_f32 v{O}, v{O}, v{Lr}\nv_mul_f32 v{O+1}, v{O+1}, v{Lr}")
    a(f"v_cvt_pk_bf16_f32 v{O}, v{O}, v{O+1}")
    a(f"ds_write_b32 v{V_XBO}, v{O} offset:{XB_O}")
    a("s_waitcnt lgkmcnt(0)\ns_barrier")
    lq = Q(a, "lgkmcnt", 15)
    D = 128
    gemv(a, lq, lambda ct, s: ar(A_WO + (ct*16 + s)*4, 4), 2, 16, D, f"v{V_B}", XB_O)
    a(f"s_lshl_b32 s{S_TMP}, s{S_HG}, 11\ns_add_u32 s{S_TMP}, s{S_TMP}, s{S_PH}\ns_add_u32 s{S_TMP}, s{S_TMP}, {WS_Y}")
    a(f"s_lshl_b32 s{S_TMP2}, s{S_CG}, 2\ns_add_u32 s{S_TMP2}, s{S_TMP2}, s{S_WAVE}\ns_lshl_b32 s{S_TMP2}, s{S_TMP2}, 7\ns_add_u32 s{S_TMP}, s{S_TMP}, s{S_TMP2}")
    set_exec(a, EX_N0)
    for ct in range(2):
        a(f"buffer_store_dwordx4 {vr(D+4*ct,4)}, v{V_G16}, {srd(SRD_WS)}, s{S_TMP} offen offset:{64*ct} sc1")
    set_exec(a, EX_ALL)

def stage_W1(a):
    a.comment("---- stage W1: x1 = x + sum Y ; LN ; w1 ; gelu")
    T = BT
    a(f"s_add_u32 s{S_TMP}, s{S_PH}, {WS_Y}\ns_add_u32 s{S_TMP2}, s{S_TMP}, 4096\ns_add_u32 s{S_T3}, s{S_TMP}, 8192\ns_add_u32 s{S_T4}, s{S_TMP}, 12288")
    so = [S_TMP, S_TMP2, S_T3, S_T4]
    def loads():
        for u in range(8):
            a(f"buffer_load_dwordx2 {vr(T+2*u,2)}, v{V_T8}, {srd(SRD_WS)}, s{so[u//2]} offen offset:{(u%2)*2048} sc1")
    poll(a, loads, [f"v{T+k}" for k in range(16)], [f"v{T+16}", f"v{T+17}"])
    Prof.mark(a, 10, "v127", S_T, 8)
    for k in range(2):
        a(f"v_add_f32 v{T+k}, v{T+k}, v{T+2+k}\nv_add_f32 v{T+4+k}, v{T+4+k}, v{T+6+k}")
        a(f"v_add_f32 v{T+8+k}, v{T+8+k}, v{T+10+k}\nv_add_f32 v{T+12+k}, v{T+12+k}, v{T+14+k}")
    for k in range(2):
        a(f"v_add_f32 v{T+k}, v{T+k}, v{T+4+k}\nv_add_f32 v{T+8+k}, v{T+8+k}, v{T+12+k}")
    for k in range(2):
        a(f"v_add_f32 v{V_XC+k}, v{V_XC+k}, v{T+k}")
    for k in range(2):
        a(f"v_add_f32 v{V_XC+k}, v{V_XC+k}, v{T+8+k}")
    x_to_lds_stats(a, XB_1, STAT1, True)
    lq = Q(a, "lgkmcnt", 15)
    stat_reads(a, lq, STAT1)
    D = 56
    gemv(a, lq, lambda ct, s: vr(V_W1 + 4*s, 4), 1, 16, D, f"v{V_B}", XB_1, pre=lambda: lq.wait("st1"), shadow=stat_shadow())
    z = T; u = T + 4
    K1 = 2*math.sqrt(2/math.pi)*math.log2(math.e); K2 = K1*0.044715
    a(f"s_mov_b32 s{S_T3}, {f2h(-K1)}\ns_mov_b32 s{S_T4}, {f2h(-K2)}")
    for k in range(4): a(f"v_fma_f32 v{z+k}, -v{V_MEAN}, v{V_CS1+k}, v{D+k}")
    for k in range(4): a(f"v_fma_f32 v{z+k}, v{z+k}, v{V_RSTD}, v{V_B1+k}")
    for k in range(4): a(f"v_mul_f32 v{u+k}, v{z+k}, v{z+k}")
    a(f"v_mov_b32 v{u+4}, s{S_T3}")
    for k in range(4): a(f"v_fma_f32 v{u+k}, v{u+k}, s{S_T4}, v{u+4}")
    for k in range(4): a(f"v_mul_f32 v{u+k}, v{u+k}, v{z+k}")
    for k in range(4): a(f"v_exp_f32 v{u+k}, v{u+k}")
    for k in range(4): a(f"v_add_f32 v{u+k}, 1.0, v{u+k}")
    for k in range(4): a(f"v_rcp_f32 v{u+k}, v{u+k}")
    for k in range(4): a(f"v_mul_f32 v{z+k}, v{z+k}, v{u+k}")
    a(f"v_cvt_pk_bf16_f32 v{z}, v{z}, v{z+1}\nv_cvt_pk_bf16_f32 v{z+1}, v{z+2}, v{z+3}")
    Ls = a.newlabel("Lnoh")
    a(f"s_cmp_ge_u32 s{S_C}, 28\ns_cbranch_scc1 {Ls}")
    a(f"s_lshl_b32 s{S_TMP}, s{S_C}, 2\ns_add_u32 s{S_TMP}, s{S_TMP}, s{S_WAVE}\ns_lshl_b32 s{S_TMP}, s{S_TMP}, 5")
    a(f"s_add_u32 s{S_TMP}, s{S_TMP}, s{S_PH}\ns_add_u32 s{S_TMP}, s{S_TMP}, {WS_H}")
    set_exec(a, EX_N0)
    a(f"buffer_store_dwordx2 {vr(z,2)}, v{V_G8}, {srd(SRD_WS)}, s{S_TMP} offen sc1")
    set_exec(a, EX_ALL)
    a.label(Ls)

def stage_W2(a):
    a.comment("---- stage W2: x2 = x1 + h @ w2 + b2 (16 columns per WG)")
    T = BT
    a(f"s_mul_i32 s{S_TMP}, s{S_WAVE}, 896\ns_add_u32 s{S_TMP}, s{S_TMP}, s{S_PH}\ns_add_u32 s{S_TMP}, s{S_TMP}, {WS_H}")
    set_exec(a, (1 << 56) - 1)
    def loads():
        a(f"buffer_load_dwordx4 {vr(T,4)}, v{V_L16}, {srd(SRD_WS)}, s{S_TMP} offen sc1")
    poll(a, loads, [f"v{T+k}" for k in range(4)], [f"v{T+4}", f"v{T+5}"])
    Prof.mark(a, 11, "v127", S_T, 8)
    a(f"ds_write_b128 v{V_HBW}, {vr(T,4)}")
    set_exec(a, EX_ALL)
    a("s_waitcnt lgkmcnt(0)")
    lq = Q(a, "lgkmcnt", 15)
    D = 128
    gemv(a, lq, lambda ct, s: vr(V_W2 + 4*s, 4), 1, 14, D, f"v{V_HBR}", 0)
    set_exec(a, EX_N0)
    a(f"ds_write_b128 v{V_RDW}, {vr(D,4)}")
    set_exec(a, EX_ALL)
    a("s_waitcnt lgkmcnt(0)\ns_barrier")
    for w in range(4):
        a(f"ds_read_b32 v{T+w}, v{V_RDR} offset:{64*w}")
    a(f"s_lshl_b32 s{S_TMP}, s{S_C}, 6\nv_add_u32 v{T+5}, s{S_TMP}, v{V_RDR}")
    a(f"v_add_u32 v{T+5}, {(X1F - RED) & 0xffffffff if X1F < RED else X1F - RED}, v{T+5}")
    a(f"ds_read_b32 v{T+4}, v{T+5}")
    a("s_waitcnt lgkmcnt(0)")
    a(f"v_add_f32 v{T}, v{T}, v{T+1}\nv_add_f32 v{T+2}, v{T+2}, v{T+3}\nv_add_f32 v{T+4}, v{T+4}, v{V_B2}")
    a(f"v_add_f32 v{T}, v{T}, v{T+2}\nv_add_f32 v{T}, v{T}, v{T+4}")

def stage_Q_core(a, s_qph):
    a.comment("---- stage Q core")
    x_to_lds_stats(a, XB_Q, STATQ, False)
    lq = Q(a, "lgkmcnt", 15)
    stat_reads(a, lq, STATQ)
    D = 52
    gemv(a, lq, lambda ct, s: ar(A_WQ + (ct*16 + s)*4, 4), 2, 16, D, f"v{V_B}", XB_Q, pre=lambda: lq.wait("st1"), shadow=stat_shadow())
    z = BT
    a(f"v_mul_f32 v{V_RSTD}, {f2h(QSCALE)}, v{V_RSTD}")
    for k in range(8): a(f"v_fma_f32 v{z+k}, -v{V_MEAN}, v{V_CSQ+k}, v{D+k}")
    for k in range(8): a(f"v_mul_f32 v{z+k}, v{z+k}, v{V_RSTD}")
    for k in range(4): a(f"v_cvt_pk_bf16_f32 v{z+k}, v{z+2*k}, v{z+2*k+1}")
    a(f"s_lshl_b32 s{S_TMP}, s{S_C}, 8\ns_lshl_b32 s{S_TMP2}, s{S_WAVE}, 6\ns_add_u32 s{S_TMP}, s{S_TMP}, s{S_TMP2}")
    a(f"s_add_u32 s{S_TMP}, s{S_TMP}, {s_qph}")
    a(f"s_lshl_b32 s{S_T3}, s{S_B}, 8\ns_add_u32 s{S_T3}, s{S_T3}, s{S_TMP2}\ns_add_u32 s{S_T3}, s{S_T3}, {SM+QB}")
    a(f"v_add_u32 v{z+4}, s{S_T3}, v{V_G8}")
    set_exec(a, EX_N0)
    for ct in range(2):
        a(f"buffer_store_dwordx2 {vr(z+2*ct,2)}, v{V_G8}, {srd(SRD_WS)}, s{S_TMP} offen offset:{WS_Q + 32*ct} sc1")
    for ct in range(2):
        a(f"ds_write_b64 v{z+4}, {vr(z+2*ct,2)} offset:{32*ct}")
    set_exec(a, EX_ALL)

def leftover_pass(a, s_ph):
    a.comment("---- leftover block pass")
    R = CR
    a("s_waitcnt lgkmcnt(0)\ns_barrier")
    a(f"s_lshl_b32 s{S_TMP}, s{S_B}, 8\nv_add_u32 v{R.T}, s{S_TMP}, v{V_B}")
    for s in range(4):
        a(f"ds_read_b128 {vr(R.q+4*s,4)}, v{R.T} offset:{QB + 64*s}")
    a(f"s_lshl_b32 s{S_TMP2}, s{S_B}, 14\ns_add_u32 s{S_TMP2}, s{S_TMP2}, s{S_REG}")
    emit_lds_addrs(a, R, f"v{V_LANE}", f"s{S_TMP2}", f"v{R.t}", f"v{R.t+1}")
    emit_pass_init(a, R)
    a("s_waitcnt lgkmcnt(0)")
    emit_block(a, R, (0, 4096), (8192, 12288))
    a(f"s_mul_i32 s{S_TMP}, s{S_WAVE}, {CSTR}\ns_add_u32 s{S_TMP}, s{S_TMP}, {SM+CCOMB}")
    emit_partial_write(a, R, f"v{V_LANE}", f"s{S_TMP}", R.T)
    a("s_waitcnt lgkmcnt(0)\ns_barrier")
    Ls = a.newlabel("Lnp")
    a(f"s_cmp_lg_u32 s{S_WAVE}, 0\ns_cbranch_scc1 {Ls}")
    a(f"s_lshl_b32 s{S_TMP2}, s{S_C}, 3\ns_add_u32 s{S_TMP2}, s{S_TMP2}, 7\ns_mul_i32 s{S_TMP2}, s{S_TMP2}, {PART_REC}")
    a(f"s_add_u32 s{S_TMP2}, s{S_TMP2}, {s_ph}\ns_add_u32 s{S_TMP2}, s{S_TMP2}, {WS_PART}")
    a(f"s_mov_b32 s{S_TMP}, {SM+CCOMB}")
    emit_combine_publish(a, f"v{V_LANE}", f"s{S_TMP}", CSTR, R.T, f"s{S_TMP2}")
    a.label(Ls)

def load_x_input(a):
    a(f"s_lshl_b32 s{S_TMP}, s{S_B}, 10")
    a(f"v_lshlrev_b32 v{TMP}, 2, v{V_TID}")
    a(f"buffer_load_dword v{TMP+1}, v{TMP}, {srd(SRD_X)}, s{S_TMP} offen")
    a("s_waitcnt vmcnt(0)")
    a(f"v_lshlrev_b32 v{V_XC}, 16, v{TMP+1}\nv_and_b32 v{V_XC+1}, 0xffff0000, v{TMP+1}")

def save_x(a):
    Lb = a.newlabel("Lsx"); Le = a.newlabel("Lsxe")
    a(f"s_cmp_eq_u32 s{S_B}, 0\ns_cbranch_scc0 {Lb}")
    a(f"v_mov_b32 v{V_XR}, v{V_XC}\nv_mov_b32 v{V_XR+1}, v{V_XC+1}\ns_branch {Le}")
    a.label(Lb)
    a(f"v_mov_b32 v{V_XR+2}, v{V_XC}\nv_mov_b32 v{V_XR+3}, v{V_XC+1}")
    a.label(Le)
def restore_x(a):
    Lb = a.newlabel("Lrx"); Le = a.newlabel("Lrxe")
    a(f"s_cmp_eq_u32 s{S_B}, 0\ns_cbranch_scc0 {Lb}")
    a(f"v_mov_b32 v{V_XC}, v{V_XR}\nv_mov_b32 v{V_XC+1}, v{V_XR+1}\ns_branch {Le}")
    a.label(Lb)
    a(f"v_mov_b32 v{V_XC}, v{V_XR+2}\nv_mov_b32 v{V_XC+1}, v{V_XR+3}")
    a.label(Le)

def wait_arrival(a, vt):
    L = a.newlabel("Larr"); D = a.newlabel("Larrd")
    a(f"v_mov_b32 {vt[1]}, 0")
    a.label(L)
    a(f"buffer_load_dword {vt[0]}, {vt[1]}, {srd(SRD_DBG)}, 0 offen sc1")
    a(f"s_waitcnt vmcnt(0)\nv_and_b32 {vt[2]}, 63, {vt[0]}\nv_cmp_ne_u32 vcc, 32, {vt[2]}")
    a(f"s_cbranch_vccz {D}")
    a(f"s_sub_u32 s{S_BUD}, s{S_BUD}, 1\ns_cbranch_scc0 {L}\ns_mov_b32 s{S_BUD}, 0")
    a.label(D)

def gen_chain(a, order):
    a.label("L_chain")
    a(f"s_lshr_b32 s{S_C}, s{S_WG}, 3")
    a(f"s_min_u32 s{S_CC}, s{S_C}, 27")
    a(f"s_lshr_b32 s{S_HG}, s{S_C}, 2\ns_and_b32 s{S_CG}, s{S_C}, 3")
    a(f"s_mul_i32 s{S_REG}, s{S_WAVE}, {WREG}")
    a(f"v_and_b32 v{V_LANE}, 63, v{V_TID}")
    t0, t1 = f"v{TMP}", f"v{TMP+1}"
    a(f"s_lshl_b32 s{S_T4}, s{S_C}, 8\ns_lshl_b32 s{S_TMP}, s{S_WAVE}, 6\ns_add_u32 s{S_T4}, s{S_T4}, s{S_TMP}")
    rd = load_weights_seg64(a, SRD_WQ, 8192, f"s{S_T4}", A_WQ)
    a(f"s_lshl_b32 s{S_TMP}, s{S_C}, 2\ns_add_u32 s{S_TMP}, s{S_TMP}, s{S_WAVE}\ns_mul_i32 s{S_TMP}, s{S_TMP}, 6144")
    a(f"v_lshlrev_b32 v{V_L16}, 4, v{V_LANE}")
    for k in range(4): a(f"v_mov_b32 v{TMP+4+k}, -1")
    for i in range(6):
        if i == 4: a(f"s_add_u32 s{S_TMP}, s{S_TMP}, 4096")
        a(f"buffer_store_dwordx4 {vr(TMP+4,4)}, v{V_L16}, {srd(SRD_WS)}, s{S_TMP} offen offset:{(i%4)*1024} sc1")
    a(f"v_lshrrev_b32 {t1}, 4, v{V_LANE}")
    a(f"v_lshlrev_b32 v{V_G16}, 4, {t1}\nv_lshlrev_b32 v{V_G8}, 3, {t1}")
    a(f"v_add_u32 v{V_B}, {SM}, v{V_G16}")
    a(f"v_lshlrev_b32 v{V_T4}, 2, v{V_TID}\nv_add_u32 v{V_T4}, {SM}, v{V_T4}")
    a(f"v_lshlrev_b32 v{V_T8}, 3, v{V_TID}\nv_add_u32 v{V_X1W}, {SM}, v{V_T8}")
    a(f"v_lshrrev_b32 {t1}, 5, v{V_LANE}\nv_mul_u32_u24 {t1}, {4*PART_REC}, {t1}")
    a(f"v_add_u32 v{V_PML}, 512, {t1}")
    a(f"v_and_b32 v{V_PO}, 31, v{V_LANE}\nv_lshlrev_b32 v{V_PO}, 4, v{V_PO}\nv_add_u32 v{V_PO}, v{V_PO}, {t1}")
    a(f"v_and_b32 v{V_XBO}, 31, v{V_LANE}\nv_lshlrev_b32 v{V_XBO}, 1, v{V_XBO}\nv_lshrrev_b32 {t1}, 5, v{V_LANE}\nv_add_u32 v{V_XBO}, v{V_XBO}, {t1}")
    a(f"v_lshlrev_b32 v{V_XBO}, 2, v{V_XBO}\ns_lshl_b32 s{S_TMP}, s{S_WAVE}, 8\ns_add_u32 s{S_TMP}, s{S_TMP}, {SM}\nv_add_u32 v{V_XBO}, s{S_TMP}, v{V_XBO}")
    a(f"s_lshl_b32 s{S_TMP}, s{S_WAVE}, 10\ns_add_u32 s{S_TMP}, s{S_TMP}, {SM+HB}")
    a(f"v_add_u32 v{V_HBW}, s{S_TMP}, v{V_L16}\nv_add_u32 v{V_HBR}, s{S_TMP}, v{V_G16}")
    a(f"s_lshl_b32 s{S_TMP}, s{S_WAVE}, 6\ns_add_u32 s{S_TMP}, s{S_TMP}, {SM+RED}\nv_add_u32 v{V_RDW}, s{S_TMP}, v{V_G16}")
    a(f"v_and_b32 v{V_L4}, 15, v{V_LANE}\nv_lshlrev_b32 v{V_L4}, 2, v{V_L4}\nv_add_u32 v{V_RDR}, {SM+RED}, v{V_L4}")
    emit_masks(a)
    rd()
    a("s_barrier")
    Prof.mark(a, 1, "v127")
    La = a.newlabel("Lnoarr")
    a(f"s_cmp_lg_u32 s{S_WAVE}, 0\ns_cbranch_scc1 {La}")
    a(f"s_getreg_b32 s{S_TMP}, hwreg(HW_REG_XCC_ID)\ns_and_b32 s{S_TMP}, s{S_TMP}, 15")
    a(f"s_mul_i32 s{S_TMP2}, s{S_TMP}, s{S_TMP}\ns_lshl_b32 s{S_TMP2}, s{S_TMP2}, 15\ns_lshl_b32 s{S_TMP}, s{S_TMP}, 6")
    a(f"s_add_u32 s{S_TMP}, s{S_TMP}, s{S_TMP2}\ns_add_u32 s{S_TMP}, s{S_TMP}, 1")
    a(f"v_mov_b32 v{TMP+4}, s{S_TMP}\nv_mov_b32 v{TMP+5}, 0")
    set_exec(a, 1)
    a(f"buffer_atomic_add v{TMP+4}, v{TMP+5}, {srd(SRD_DBG)}, 0 offen sc1")
    set_exec(a, EX_ALL)
    a.label(La)
    colsum(a, lambda ct, s: ar(A_WQ + (ct*16 + s)*4, 4), 2, 16, V_CSQ)
    a(f"s_lshl_b32 s{S_T4}, s{S_HG}, 19")
    a(f"s_lshl_b32 s{S_TMP}, s{S_CG}, 2\ns_add_u32 s{S_TMP}, s{S_TMP}, s{S_WAVE}\ns_lshl_b32 s{S_TMP}, s{S_TMP}, 6\ns_add_u32 s{S_T4}, s{S_T4}, s{S_TMP}")
    for b in (1, 0):
        a(f"v_lshlrev_b32 v{TMP+6}, 2, v{V_TID}")
        a(f"buffer_load_dword v{V_XR+2*b+1}, v{TMP+6}, {srd(SRD_X)}, 0 offen offset:{1024*b}")
    a("s_waitcnt vmcnt(0)")
    for b in (1, 0):
        a(f"v_lshlrev_b32 v{V_XR+2*b}, 16, v{V_XR+2*b+1}\nv_and_b32 v{V_XR+2*b+1}, 0xffff0000, v{V_XR+2*b+1}")
    wait_arrival(a, [f"v{TMP+4}", f"v{TMP+5}", f"v{TMP+6}"])
    Prof.mark(a, 2, "v127")
    for b in (1, 0):
        a(f"s_mov_b32 s{S_B}, {b}\ns_mov_b32 s{S_QPH}, {b*PH}")
        a(f"v_mov_b32 v{V_XC}, v{V_XR+2*b}\nv_mov_b32 v{V_XC+1}, v{V_XR+2*b+1}")
        stage_Q_core(a, f"s{S_QPH}")
    Prof.mark(a, 3, "v127")
    rd = load_weights_seg64(a, SRD_WO, 1024, f"s{S_T4}", A_WO)
    rd()
    Prof.mark(a, 4, "v127")
    load_w12(a)
    colsum(a, lambda ct, s: vr(V_W1 + 4*s, 4), 1, 16, V_CS1)
    a(f"s_lshl_b32 s{S_TMP}, s{S_CC}, 2\ns_add_u32 s{S_TMP}, s{S_TMP}, s{S_WAVE}\ns_lshl_b32 s{S_TMP}, s{S_TMP}, 5")
    a(f"buffer_load_dwordx2 {vr(TMP,2)}, v{V_G8}, {srd(SRD_B1)}, s{S_TMP} offen")
    a(f"s_lshl_b32 s{S_TMP2}, s{S_C}, 5\nv_lshrrev_b32 v{TMP+2}, 1, v{V_L4}")
    a(f"buffer_load_ushort v{V_B2}, v{TMP+2}, {srd(SRD_B2)}, s{S_TMP2} offen")
    emit_dma_voff(a, f"v{V_DE}", f"v{V_DO}", f"v{V_LANE}", f"v{TMP+3}", f"v{TMP+4}")
    a(f"s_add_u32 s{S_TMP}, s{S_WAVE}, 252\ns_lshl_b32 s{S_TMP}, s{S_TMP}, 13\ns_lshl_b32 s{S_TMP2}, s{S_C}, 21\ns_add_u32 s{S_TMP}, s{S_TMP}, s{S_TMP2}")
    for b in (1, 0):
        for (i, (sn, add)) in enumerate(((SRD_K, 0), (SRD_K, 4096), (SRD_V, 0), (SRD_V, 4096))):
            a(f"s_add_u32 s{S_T3}, s{S_TMP}, {b*(64<<20) + add}\ns_add_u32 s{S_T4}, s{S_REG}, {(b*4+i)*4096}")
            dma_tile(a, sn, f"s{S_T3}", f"s{S_T4}", f"v{V_DE}", f"v{V_DO}")
    a("s_waitcnt vmcnt(32)")
    a(f"v_lshlrev_b32 v{V_B1}, 16, v{TMP}\nv_and_b32 v{V_B1+1}, 0xffff0000, v{TMP}\nv_lshlrev_b32 v{V_B1+2}, 16, v{TMP+1}\nv_and_b32 v{V_B1+3}, 0xffff0000, v{TMP+1}")
    a(f"v_lshlrev_b32 v{V_B2}, 16, v{V_B2}")
    a("s_waitcnt vmcnt(0)")
    for b in (1, 0):
        a(f"s_mov_b32 s{S_B}, {b}\ns_mov_b32 s{S_QPH}, {b*PH}")
        leftover_pass(a, f"s{S_QPH}")
    Prof.mark(a, 5, "v127")
    seq = 0
    for t, p in enumerate(order): seq |= p << (4*t)
    a(f"s_mov_b32 s{S_T}, 0")
    a.label("L_cloop")
    a(f"s_lshl_b32 s{S_TMP}, s{S_T}, 2\ns_lshr_b32 s{S_PID}, {hex(seq)}, s{S_TMP}\ns_and_b32 s{S_PID}, s{S_PID}, 3")
    a(f"s_and_b32 s{S_B}, s{S_PID}, 1\ns_lshr_b32 s{S_LAYER}, s{S_PID}, 1\ns_mul_i32 s{S_PH}, s{S_PID}, {PH}")
    restore_x(a)
    Prof.mark(a, 8, "v127", S_T, 8)
    stage_O(a)
    stage_W1(a)
    stage_W2(a)
    T = BT
    Lout = a.newlabel("Lout"); Lnext = a.newlabel("Lnext")
    a(f"s_cmp_eq_u32 s{S_LAYER}, 1\ns_cbranch_scc1 {Lout}")
    Lw = a.newlabel("Lx2")
    a(f"s_cmp_lg_u32 s{S_WAVE}, 0\ns_cbranch_scc1 {Lw}")
    a(f"s_lshl_b32 s{S_TMP}, s{S_C}, 6\ns_add_u32 s{S_TMP}, s{S_TMP}, s{S_PH}\ns_add_u32 s{S_TMP}, s{S_TMP}, {WS_X2}")
    set_exec(a, 0xffff)
    a(f"buffer_store_dword v{T}, v{V_L4}, {srd(SRD_WS)}, s{S_TMP} offen sc1")
    set_exec(a, EX_ALL)
    a.label(Lw)
    a(f"s_add_u32 s{S_TMP}, s{S_PH}, {WS_X2}")
    poll(a, lambda: a(f"buffer_load_dwordx2 {vr(V_XC,2)}, v{V_T8}, {srd(SRD_WS)}, s{S_TMP} offen sc1"),
         [f"v{V_XC}", f"v{V_XC+1}"], [f"v{T}", f"v{T+1}"])
    Prof.mark(a, 12, "v127", S_T, 8)
    save_x(a)
    a(f"s_add_u32 s{S_QPH}, s{S_PH}, {2*PH}")
    stage_Q_core(a, f"s{S_QPH}")
    Prof.mark(a, 13, "v127", S_T, 8)
    leftover_pass(a, f"s{S_QPH}")
    a(f"s_branch {Lnext}")
    a.label(Lout)
    Lo = a.newlabel("Lo2")
    a(f"s_cmp_lg_u32 s{S_WAVE}, 0\ns_cbranch_scc1 {Lo}")
    a(f"v_cvt_pk_bf16_f32 v{T}, v{T}, v{T}")
    a(f"s_lshl_b32 s{S_TMP}, s{S_B}, 10\ns_lshl_b32 s{S_TMP2}, s{S_C}, 5\ns_add_u32 s{S_TMP}, s{S_TMP}, s{S_TMP2}")
    a(f"v_lshrrev_b32 v{T+1}, 1, v{V_L4}")
    set_exec(a, 0xffff)
    a(f"buffer_store_short v{T}, v{T+1}, {srd(SRD_OUT)}, s{S_TMP} offen")
    set_exec(a, EX_ALL)
    a.label(Lo)
    a.label(Lnext)
    Prof.mark(a, 14, "v127", S_T, 8)
    a(f"s_add_u32 s{S_T}, s{S_T}, 1\ns_cmp_lt_u32 s{S_T}, 4\ns_cbranch_scc1 L_cloop")
    a("s_waitcnt vmcnt(0)\ns_endpgm")
```

```python
import sys
from common_gen import *
from gen_chain import gen_chain
from gen_attn1 import gen_attn1

HEADER = open("cdna_kernels/" + NAME + ".s.ref").read().split("; Override launch geometry")[0]

def gen(variant="v1", pol="nt", prof="0", polv=None, order="1032"):
    Prof.on = prof == "1"
    a = Asm()
    kn = NAME + "_kernel"
    a.raw(HEADER.rstrip("\n"))
    a.raw("; @launch grid=(256,1,1) block=(256,1,1) lds=163840")
    a.raw('.amdgcn_target "amdgcn-amd-amdhsa--gfx950"\n.text')
    a.raw(f".globl {kn}\n.p2align 8\n.type {kn},@function\n{kn}:")
    a(f"s_cmp_ge_u32 s{S_WG}, 256\ns_cbranch_scc1 L_exit")
    a("s_load_dwordx16 s[16:31], s[0:1], 0\ns_load_dwordx8 s[32:39], s[0:1], 64\ns_load_dwordx2 s[40:41], s[0:1], 96")
    a("v_lshrrev_b32 v1, 6, v0")
    a(f"v_readfirstlane_b32 s{S_WAVE}, v1")
    a(f"s_mov_b32 s{S_BUD}, {POLL_BUDGET}")
    a("s_waitcnt lgkmcnt(0)")
    build_srd(a, SRD_WS, 40, 0x140000 if Prof.on else WS_SIZE)
    Prof.init(a)
    Prof.mark(a, 0, 'v63')
    build_srd(a, SRD_K, 18, 128 << 20)
    build_srd(a, SRD_V, 20, 128 << 20)
    build_srd(a, SRD_DBG, 38, 256)
    a(f"s_and_b32 s42, s{S_WG}, 7\ns_cmp_lg_u32 s42, 0\ns_cbranch_scc1 L_attn")
    build_srd(a, SRD_WQ, 22, 512*4096*2)
    build_srd(a, SRD_WO, 24, 512*4096*2)
    build_srd(a, SRD_W1, 28, 512*1792*2)
    build_srd(a, SRD_W2, 32, 512*1792*2)
    build_srd(a, SRD_X, 16, 2048)
    build_srd(a, SRD_B1, 30, 1792*2)
    build_srd(a, SRD_B2, 34, 1024)
    build_srd(a, SRD_OUT, 36, 2048)
    order = [int(c) for c in order]
    gen_chain(a, order)
    gen_attn1(a, order, pol, polv)
    a.raw("L_exit:\ns_endpgm")
    a.raw('.section .rodata,"a"\n.p2align 6')
    a.raw(f".amdhsa_kernel {kn}\n  .amdhsa_next_free_vgpr 512\n  .amdhsa_next_free_sgpr 102\n  .amdhsa_accum_offset 256")
    a.raw("  .amdhsa_group_segment_fixed_size 0\n  .amdhsa_kernarg_size 104\n  .amdhsa_user_sgpr_count 2\n  .amdhsa_user_sgpr_kernarg_segment_ptr 1\n  .amdhsa_system_sgpr_workgroup_id_x 1\n.end_amdhsa_kernel")
    return a.text()

if __name__ == "__main__":
    out = sys.argv[1] if len(sys.argv) > 1 else "cdna_kernels/" + NAME + ".s"
    kw = dict(x.split("=") for x in sys.argv[2:])
    open(out, "w").write(gen(**kw))
    print("wrote", out)
```

```python
from common_gen import *
MF = "v_mfma_f32_16x16x32_bf16"
S_ROW = 34
S_HEAD = 80; S_WIDX = 82; S_IT = 83; S_DOA = 84; S_DOB = 85; S_P1 = 86; S_RET = 87
S_TMP = 88; S_TMP2 = 89; S_REG = 90; S_T3 = 91; S_PID = 92; S_DRY = 93; S_QOFF = 94
QBUF = 0
CNT = 1024
COMB = 1280; CSTR = 544
assert COMB + 5*4*CSTR <= 16384
T16 = 0; S8 = 16; QB8 = 24; ACC = 32; VM = 36; VL = 37; V_DE = 38; V_DO = 39; V_KA = 40; V_VA = 41
TT = 42
X0 = 46; X1 = 47
def KT(k): return 48 + 16*k
def VB(i): return 32*i
ROWB = 28*8192
SL_K8 = (5, 6); SL_V8 = (7, 8)
SL_K61 = 2; SL_K70 = 3; SL_K71 = 4

class Attn2:
    def __init__(s, a, D=2, polk="nt", polv="nt", polre=None, dry=False):
        s.a = a; s.D = D; s.polk = polk; s.polv = polv
        s.polre = polre
        s.dry = dry
        s.vq = Q(a, "vmcnt", 63)
        s.lq = Q(a, "lgkmcnt", 15)

    def lane(s, dst):
        s.a(f"v_mbcnt_lo_u32_b32 {dst}, -1, 0\nv_mbcnt_hi_u32_b32 {dst}, -1, {dst}")

    def issue(s, kind, blk, h, slot, tag, first_read=False):
        a = s.a
        pol = s.polk if kind == "K" else s.polv
        if first_read and s.polre is not None: pol = s.polre
        so = f"s{S_ROW+blk}"
        if h:
            a(f"s_add_u32 s{S_TMP}, {so}, 4096"); so = f"s{S_TMP}"
        a(f"s_add_u32 m0, s{S_REG}, {slot*4096}" if slot else f"s_mov_b32 m0, s{S_REG}")
        sn = SRD_K if kind == "K" else SRD_V
        for t in range(4):
            a(f"buffer_load_dwordx4 v{V_DE if t % 2 == 0 else V_DO}, {srd(sn)}, {so} offen offset:{t*1024} {pol} lds")
            s.vq.issue(tag)

    def read_k(s, slot, dst):
        a = s.a
        for st in range(4):
            if st == 0: ad = f"v{V_KA}"
            else:
                ad = f"v{X0 if st % 2 else X1}"
                a(f"v_xor_b32 {ad}, {st<<6}, v{V_KA}")
            a(f"ds_read_b128 {dst(st)}, {ad} offset:{slot*4096}"); s.lq.issue(("k", slot))

    def read_k2(s, slots, dsts):
        a = s.a
        for st in range(4):
            if st == 0: ad = f"v{V_KA}"
            else:
                ad = f"v{X0 if st % 2 else X1}"
                a(f"v_xor_b32 {ad}, {st<<6}, v{V_KA}")
            for slot, dst in zip(slots, dsts):
                a(f"ds_read_b128 {dst(st)}, {ad} offset:{slot*4096}"); s.lq.issue(("k", slot))

    def read_v(s, slots, dsts, dgs=range(8)):
        a = s.a
        for d in dgs:
            if d == 0: ad = f"v{V_VA}"
            else:
                ad = f"v{X0 if d % 2 else X1}"
                a(f"v_xor_b32 {ad}, {d<<5}, v{V_VA}")
            for slot, dst in zip(slots, dsts):
                a(f"ds_read_b64_tr_b16 {dst(d)}, {ad} offset:{slot*4096}"); s.lq.issue(("v", slot))

    def qk(s, A0, A1, S=S8):
        a = s.a
        for st in range(4):
            for (T, A) in ((0, A0), (1, A1)):
                C = "0" if st == 0 else vr(S + 4*T, 4)
                a(f"{MF} {vr(S+4*T,4)}, {A(st)}, {vr(T16+4*st,4)}, {C}")

    def softmax(s):
        a = s.a; S = S8; t = TT
        a(f"v_max3_f32 v{t}, v{S}, v{S+1}, v{S+2}")
        a(f"v_max3_f32 v{t+1}, v{S+4}, v{S+5}, v{S+6}")
        a(f"v_max3_f32 v{t}, v{t}, v{S+3}, v{S+7}")
        a(f"v_max3_f32 v{t}, v{t}, v{t+1}, v{VM}")
        for sw in ("v_permlane16_swap_b32", "v_permlane32_swap_b32"):
            a(f"v_mov_b32 v{t+1}, v{t}")
            a(f"{sw} v{t}, v{t+1}")
            a(f"v_max_f32 v{t}, v{t}, v{t+1}")
        a(f"v_sub_f32 v{t+1}, v{VM}, v{t}")
        a(f"v_exp_f32 v{t+1}, v{t+1}")
        a(f"v_mov_b32 v{VM}, v{t}")
        for k in range(8): a(f"v_sub_f32 v{S+k}, v{S+k}, v{t}")
        for k in range(8): a(f"v_exp_f32 v{S+k}, v{S+k}")
        a(f"v_mul_f32 v{VL}, v{VL}, v{t+1}")
        for k in range(4): a(f"v_mul_f32 v{ACC+k}, v{ACC+k}, v{t+1}")
        a(f"v_add_f32 v{t+2}, v{S}, v{S+1}\nv_add_f32 v{t+3}, v{S+2}, v{S+3}")
        a(f"v_add_f32 v{t+2}, v{t+2}, v{S+4}\nv_add_f32 v{t+3}, v{t+3}, v{S+5}")
        a(f"v_add_f32 v{t+2}, v{t+2}, v{S+6}\nv_add_f32 v{t+3}, v{t+3}, v{S+7}")
        a(f"v_add_f32 v{VL}, v{VL}, v{t+2}\nv_add_f32 v{VL}, v{VL}, v{t+3}")
        for k in range(4): a(f"v_cvt_pk_bf16_f32 v{S+k}, v{S+2*k}, v{S+2*k+1}")

    def pv(s, A, dgs=range(8), pre=None):
        a = s.a
        dgs = list(dgs)
        def mask(d):
            b = QB8 + 4*(d & 1)
            for k in range(4):
                a(f"v_cndmask_b32_e64 v{b+k}, 0, v{S8+k}, s[{S_MASK+2*d}:{S_MASK+2*d+1}]")
        mask(dgs[0])
        for i, d in enumerate(dgs):
            if i + 1 < len(dgs): mask(dgs[i+1])
            if pre: pre(d)
            a(f"{MF} {vr(ACC,4)}, {A(d)}, {vr(QB8 + 4*(d & 1),4)}, {vr(ACC,4)}")

    def state_init(s):
        a = s.a
        a(f"v_mov_b32 v{VM}, 0xff800000\nv_mov_b32 v{VL}, 0")
        for k in range(4): a(f"v_mov_b32 v{ACC+k}, 0")

    def skip_unless(s, sflag):
        a = s.a
        L = a.newlabel("Lsk")
        a(f"s_cmp_eq_u32 s{sflag}, 0\ns_cbranch_scc1 {L}")
        return lambda: a.label(L)

    def combine_publish(s):
        a = s.a
        x, y, z = f"v{X0}", f"v{X1}", f"v{TT}"
        a(f"s_lshl_b32 s{S_TMP}, s{S_PID}, 2\ns_add_u32 s{S_TMP}, s{S_TMP}, {SM+CNT}\nv_mov_b32 {x}, s{S_TMP}\nv_mov_b32 {y}, 1")
        a("s_waitcnt lgkmcnt(0)")
        set_exec(a, 1)
        a(f"ds_add_rtn_u32 {z}, {x}, {y}\ns_waitcnt lgkmcnt(0)")
        a(f"v_readfirstlane_b32 s{S_TMP}, {z}")
        set_exec(a, EX_ALL)
        Ls = a.newlabel("Lnopub")
        a(f"s_cmp_lg_u32 s{S_TMP}, 3\ns_cbranch_scc1 {Ls}")
        a(f"s_mul_i32 s{S_TMP}, s{S_PID}, {4*CSTR}\ns_add_u32 s{S_TMP}, s{S_TMP}, {SM+COMB}")
        a(f"s_lshl_b32 s{S_TMP2}, s{S_HEAD}, 3\ns_add_u32 s{S_TMP2}, s{S_TMP2}, s{S_WIDX}\ns_mul_i32 s{S_TMP2}, s{S_TMP2}, {PART_REC}")
        a(f"s_mul_i32 s{S_T3}, s{S_PID}, {PH}\ns_add_u32 s{S_TMP2}, s{S_TMP2}, s{S_T3}\ns_add_u32 s{S_TMP2}, s{S_TMP2}, {WS_PART}")
        s.lane(f"v{TT+1}")
        emit_combine_publish(a, f"v{TT+1}", f"s{S_TMP}", CSTR, 0, f"s{S_TMP2}")
        a.label(Ls)

    def rec_addr(s):
        a = s.a
        a(f"s_lshl_b32 s{S_TMP2}, s{S_PID}, 2\ns_add_u32 s{S_TMP2}, s{S_TMP2}, s{S_WAVE}\ns_mul_i32 s{S_TMP2}, s{S_TMP2}, {CSTR}\ns_add_u32 s{S_TMP2}, s{S_TMP2}, {SM+COMB}")

    def publish_compact(s):
        a = s.a
        class R: pass
        R.t = TT; R.l = VL; R.m = VM; R.acc = ACC
        s.rec_addr()
        s.lane(f"v{T16+2}")
        emit_partial_write(a, R, f"v{T16+2}", f"s{S_TMP2}", T16)
        s.combine_publish()

    def tile_of(s, n):
        i, r = divmod(n, 4)
        return ("K" if r < 2 else "V", i, r & 1)
    def ring_next(s, n):
        slot = n % 5
        m = n + 5
        if m < 24:
            k, i, h = s.tile_of(m)
            s.issue(k, i, h, slot, ("R", m))
        elif m == 24: s.issue("K", 7, 1, slot, "K71", first_read=False); assert slot == SL_K71
        elif m == 25: s.issue("K", 6, 0, slot, "K60"); assert slot == 0
        elif m == 26: s.issue("V", 6, 0, slot, "V60"); assert slot == 1
        elif m == 27: s.issue("K", 6, 1, slot, "K61"); assert slot == SL_K61
        elif m == 28: s.issue("V", 6, 1, slot, "V61"); assert slot == 3

    def move(s, n):
        a = s.a
        k, i, h = s.tile_of(n)
        slot = n % 5
        s.vq.wait(("R", n))
        if k == "K":
            s.read_k(slot, lambda st: vr(KT(2*i+h) + 4*st, 4))
        else:
            s.read_v([slot], [lambda d: ar(VB(i) + 4*d + 2*h, 2)])
        s.lq.waitall()
        s.ring_next(n)

    def initial_issue(s, which):
        def R(n):
            k, i, h = s.tile_of(n); s.issue(k, i, h, n % 5, ("R", n))
        for w in which:
            if w == 0: R(0); R(1)
            if w == 1: s.issue("K", 8, 0, SL_K8[0], "K80"); s.issue("K", 8, 1, SL_K8[1], "K81")
            if w == 2: R(2)
            if w == 3: R(3); R(4)
            if w == 4: s.issue("V", 8, 0, SL_V8[0], "V80"); s.issue("V", 8, 1, SL_V8[1], "V81")

    def block8(s):
        a = s.a
        tmp = VB(7)
        s.vq.wait("K81")
        s.read_k2(SL_K8, [lambda st: ar(tmp + 4*st, 4), lambda st: ar(tmp + 16 + 4*st, 4)])
        s.lq.waitall()
        s.qk(lambda st: ar(tmp + 4*st, 4), lambda st: ar(tmp + 16 + 4*st, 4))
        s.vq.wait("V81")
        s.read_v(SL_V8, [lambda d: ar(tmp + 4*d, 2), lambda d: ar(tmp + 4*d + 2, 2)])
        s.softmax()
        s.lq.waitall()
        s.pv(lambda d: ar(tmp + 4*d, 4))

    def poll_q(s, soff_text):
        a = s.a
        s.lane(f"v{X0}")
        a(f"v_lshrrev_b32 v{X0}, 4, v{X0}\nv_lshlrev_b32 v{X0}, 4, v{X0}")
        def loads():
            for st in range(4):
                a(f"buffer_load_dwordx4 {vr(T16+4*st,4)}, v{X0}, {srd(SRD_WS)}, {soff_text} offen offset:{WS_Q + 64*st} sc1")
        poll(a, loads, [f"v{T16+k}" for k in range(16)], [f"v{TT}", f"v{TT+1}"])
        s.vq.q = []

    def q_soff(s, dst, pid_text):
        a = s.a
        a(f"s_mul_i32 {dst}, {pid_text}, {PH}\ns_lshl_b32 s{S_TMP2}, s{S_HEAD}, 8\ns_add_u32 {dst}, {dst}, s{S_TMP2}")

    def stream_block(s, blk, nxt):
        a = s.a; lq = s.lq; vq = s.vq
        qa = f"v{TT+3}"
        s.lane(qa)
        a(f"v_lshrrev_b32 {qa}, 4, {qa}\nv_lshlrev_b32 {qa}, 4, {qa}\ns_lshl_b32 s{S_TMP}, s{S_WAVE}, 8\ns_add_u32 s{S_TMP}, s{S_TMP}, {SM+QBUF}\nv_add_u32 {qa}, s{S_TMP}, {qa}")
        def qread(st, buf):
            a(f"ds_read_b128 {vr(QB8+4*buf,4)}, {qa} offset:{64*st}"); lq.issue(("q", buf))
        for h in range(2):
            vq.wait(("SK", blk, h))
            s.read_k(h, lambda st: vr(T16 + 4*st, 4))
            qread(0, 0); qread(1, 1)
            lq.wait(("k", h))
            s.issue("V", blk, h, h, ("SV", blk, h), first_read=True)
            for st in range(4):
                lq.wait(("q", st & 1))
                C = "0" if st == 0 else vr(S8 + 4*h, 4)
                a(f"{MF} {vr(S8+4*h,4)}, {vr(T16+4*st,4)}, {vr(QB8+4*(st&1),4)}, {C}")
                if st < 2: qread(st + 2, st & 1)
        s.softmax()
        vq.wait(("SV", blk, 1))
        for r in range(2):
            dg = range(4*r, 4*r + 4)
            s.read_v([0, 1], [lambda d: vr(T16 + 4*(d & 3), 2), lambda d: vr(T16 + 4*(d & 3) + 2, 2)], dg)
            lq.waitall()
            if r == 1: nxt()
            s.pv(lambda d: vr(T16 + 4*(d & 3), 4), dg)

    def pass2(s):
        a = s.a; lq = s.lq
        Sreg = {0: S8, 1: QB8, 2: KT(3), 3: KT(3)+8, 4: KT(6), 5: KT(6)+8, 8: KT(7), 6: KT(7)+8, 7: KT(8)}
        WACC = KT(9); LACC = KT(11); ONES = KT(11) + 4; NM = KT(11) + 8; MX = KT(11) + 10
        def V(k): return lambda st: vr(KT(k) + 4*st, 4)
        def restart(w):
            end = s.skip_unless(S_RET)
            s.initial_issue([w])
            end()
        t = TT
        maxq = []
        first = [True]
        def maxops(b):
            S = Sreg[b]
            if first[0]:
                first[0] = False
                return [f"v_max3_f32 v{t}, v{S}, v{S+1}, v{S+2}", f"v_max3_f32 v{t+1}, v{S+3}, v{S+4}, v{S+5}",
                        f"v_max3_f32 v{t}, v{t}, v{S+6}, v{S+7}"]
            return [f"v_max3_f32 v{t}, v{t}, v{S}, v{S+1}", f"v_max3_f32 v{t+1}, v{t+1}, v{S+2}, v{S+3}",
                    f"v_max3_f32 v{t}, v{t}, v{S+4}, v{S+5}", f"v_max3_f32 v{t+1}, v{t+1}, v{S+6}, v{S+7}"]
        def pair(b, A0, A1, shadow):
            S = Sreg[b]
            shadow = list(shadow)
            for st in range(4):
                for (T, A) in ((0, A0), (1, A1)):
                    C = "0" if st == 0 else vr(S + 4*T, 4)
                    a(f"{MF} {vr(S+4*T,4)}, {A(st)}, {vr(T16+4*st,4)}, {C}")
                    if st >= 2 and shadow: a(shadow.pop(0))
            for l in shadow: a(l)
        pair(0, V(0), V(1), [])
        s.read_k2(SL_K8, [V(0), V(1)])
        pair(1, V(2), V(3), [])
        s.read_k(SL_K61, V(2))
        pair(2, V(4), V(5), maxops(0))
        lq.wait(("k", SL_K8[1]))
        restart(1)
        s.read_k2((SL_K70, SL_K71), [V(4), V(5)])
        pair(3, V(6), V(7), maxops(1))
        lq.wait(("k", SL_K61))
        restart(2)
        pair(4, V(8), V(9), maxops(2))
        lq.wait(("k", SL_K71))
        restart(3)
        pair(5, V(10), V(11), maxops(3))
        pair(8, V(0), V(1), maxops(4))
        s.read_v(SL_V8, [lambda d: vr(KT(0) + 4*d, 2), lambda d: vr(KT(0) + 4*d + 2, 2)], range(4))
        pair(6, V(12), V(2), maxops(5))
        s.read_v(SL_V8, [lambda d: vr(KT(0) + 4*d, 2), lambda d: vr(KT(0) + 4*d + 2, 2)], range(4, 8))
        pair(7, V(4), V(5), maxops(8))
        for k in range(4): a(f"v_mov_b32 v{ONES+k}, 0x3f803f80")
        for l in maxops(6): a(l)
        lq.waitall()
        restart(4)
        for l in maxops(7): a(l)
        a(f"v_max_f32 v{t}, v{t}, v{t+1}")
        for sw in ("v_permlane16_swap_b32", "v_permlane32_swap_b32"):
            a(f"v_mov_b32 v{t+1}, v{t}")
            a(f"{sw} v{t}, v{t+1}")
            a(f"v_max_f32 v{t}, v{t}, v{t+1}")
        a(f"v_sub_f32 v{NM}, 0, v{t}\nv_sub_f32 v{NM+1}, 0, v{t}\nv_mov_b32 v{MX}, v{t}")
        order = [0, 1, 2, 3, 4, 5, 8, 6, 7]
        def Vop(b):
            if b == 8: return lambda d: vr(KT(0) + 4*d, 4)
            return lambda d: ar(VB(b) + 4*d, 4)
        def prob(b):
            S = Sreg[b]
            L = [f"v_pk_add_f32 {vr(S+2*k,2)}, {vr(S+2*k,2)}, {vr(NM,2)}" for k in range(4)]
            L += [f"v_exp_f32 v{S+k}, v{S+k}" for k in range(8)]
            L += [f"v_cvt_pk_bf16_f32 v{S+k}, v{S+2*k}, v{S+2*k+1}" for k in range(4)]
            return L
        for l in prob(order[0]): a(l)
        for i, b in enumerate(order):
            sh = prob(order[i+1]) if i + 1 < len(order) else []
            S = Sreg[b]
            for d in range(8):
                C = "0" if i == 0 else vr(WACC + 4*d, 4)
                a(f"{MF} {vr(WACC+4*d,4)}, {Vop(b)(d)}, {vr(S,4)}, {C}")
                for _ in range(2):
                    if sh: a(sh.pop(0))
            C = "0" if i == 0 else vr(LACC, 4)
            a(f"{MF} {vr(LACC,4)}, {vr(ONES,4)}, {vr(S,4)}, {C}")
        s.rec_addr()
        s.lane(f"v{X0}")
        a(f"v_lshrrev_b32 v{X0}, 4, v{X0}\nv_lshlrev_b32 v{X0}, 4, v{X0}\nv_add_u32 v{X0}, s{S_TMP2}, v{X0}")
        a(f"v_mov_b32 v{X1}, s{S_TMP2}")
        a(f"v_mov_b32 v{MX+1}, v{LACC}")
        set_exec(a, EX_N0)
        for d in range(8):
            a(f"ds_write_b128 v{X0}, {vr(WACC+4*d,4)} offset:{64*d}")
        set_exec(a, 1)
        a(f"ds_write_b64 v{X1}, {vr(MX,2)} offset:512")
        set_exec(a, EX_ALL)

    def gen(s):
        a = s.a; vq = s.vq; lq = s.lq; D = s.D
        a.label("L_attn")
        a(f"s_lshr_b32 s{S_HEAD}, s{S_WG}, 3\ns_and_b32 s{S_WIDX}, s{S_WG}, 7\ns_sub_u32 s{S_WIDX}, s{S_WIDX}, 1")
        a(f"s_lshl_b32 s{S_T3}, s{S_WIDX}, 2\ns_add_u32 s{S_T3}, s{S_T3}, s{S_WAVE}")
        a(f"s_mul_i32 s{S_REG}, s{S_WAVE}, {WREG}")
        a(f"v_and_b32 v0, 63, v0")
        emit_dma_voff(a, f"v{V_DE}", f"v{V_DO}", "v0", "v1", "v2")
        a(f"s_add_u32 s{S_TMP}, s{S_HEAD}, s{S_T3}\ns_mul_i32 s{S_TMP2}, s{S_TMP}, 7282\ns_lshr_b32 s{S_TMP2}, s{S_TMP2}, 16\ns_mul_i32 s{S_TMP2}, s{S_TMP2}, 9\ns_sub_u32 s{S_TMP}, s{S_TMP}, s{S_TMP2}")
        a(f"s_lshl_b32 s{S_TMP2}, s{S_HEAD}, 21\ns_lshl_b32 s{S_T3}, s{S_T3}, 13\ns_add_u32 s{S_T3}, s{S_T3}, s{S_TMP2}\ns_add_u32 s{S_T3}, s{S_T3}, {64<<20}")
        for i in range(9):
            a(f"s_mul_i32 s{S_ROW+i}, s{S_TMP}, {ROWB}\ns_add_u32 s{S_ROW+i}, s{S_ROW+i}, s{S_T3}")
            if i < 8: a(f"s_add_u32 s{S_TMP}, s{S_TMP}, 1\ns_cmp_eq_u32 s{S_TMP}, 9\ns_cselect_b32 s{S_TMP}, 0, s{S_TMP}")
        s.initial_issue([0, 1, 2, 3, 4])
        class R: pass
        R.ka = [V_KA, 4, 5, 6]; R.va = [V_VA] + list(range(8, 15))
        emit_lds_addrs(a, R, "v0", f"s{S_REG}", "v1", "v2")
        emit_masks(a)
        a(f"v_lshlrev_b32 v1, 2, v0\nv_add_u32 v1, {SM+CNT}, v1\nv_mov_b32 v2, 0")
        set_exec(a, 0xff)
        a("ds_write_b32 v1, v2")
        set_exec(a, EX_ALL)
        a("s_waitcnt lgkmcnt(0)\ns_barrier")
        Prof.mark(a, 1, f"v{X1}")
        s.state_init()
        a(f"s_mov_b32 s{S_IT}, 0\ns_mov_b32 s{S_DOA}, 1\ns_mov_b32 s{S_DOB}, 0\ns_mov_b32 s{S_P1}, 1")
        start_q = list(vq.q)
        a.label("L_it")
        CHECK = 4
        for i in range(6):
            e = s.skip_unless(S_DOA); s.move(4*i); s.move(4*i + 1); e()
            if i == 2 and D == 2:
                e = s.skip_unless(S_DOB); s.block8(); e()
            if i == 2 and D == 3:
                a(f"s_xor_b32 s{S_TMP}, s{S_IT}, 1\ns_and_b32 s{S_T3}, s{S_TMP}, s{S_DOB}")
                e = s.skip_unless(S_T3); s.block8(); e()
            e = s.skip_unless(S_DOB)
            s.qk(lambda st: vr(KT(2*i) + 4*st, 4), lambda st: vr(KT(2*i+1) + 4*st, 4))
            s.softmax()
            e()
            e = s.skip_unless(S_DOA); s.move(4*i + 2); s.move(4*i + 3); e()
            e = s.skip_unless(S_DOB); s.pv(lambda d: ar(VB(i) + 4*d, 4)); e()
            if i == 0:
                e = s.skip_unless(S_P1)
                a(f"buffer_load_dword v{S8}, off, {srd(SRD_DBG)}, 0 sc1")
                e()
                s._cnt0 = s.total_issued()
            if i == 2:
                e = s.skip_unless(S_P1)
                a(f"s_waitcnt vmcnt({min(63, s.total_issued() - s._cnt0)})")
                Lok = a.newlabel("Larrok")
                a(f"v_and_b32 v{S8}, 63, v{S8}\nv_cmp_ne_u32 vcc, 32, v{S8}\ns_cbranch_vccz {Lok}")
                from gen_chain import wait_arrival
                wait_arrival(a, [f"v{S8}", f"v{S8+1}", f"v{S8+2}"])
                a.label(Lok)
                Prof.mark(a, 2, f"v{X1}")
                s.q_soff(f"s{S_QOFF}", "1")
                s.lane(f"v{X0}")
                a(f"v_lshlrev_b32 v{X1}, 2, v{X0}\nv_lshrrev_b32 v{X0}, 4, v{X0}\nv_lshlrev_b32 v{X0}, 4, v{X0}")
                for st in range(4):
                    a(f"buffer_load_dwordx4 {vr(T16+4*st,4)}, v{X0}, {srd(SRD_WS)}, s{S_QOFF} offen offset:{WS_Q + 64*st} sc1")
                a(f"s_sub_u32 s{S_TMP}, s{S_QOFF}, {PH}")
                a(f"buffer_load_dword v{S8}, v{X1}, {srd(SRD_WS)}, s{S_TMP} offen offset:{WS_Q} sc1")
                e()
                s._cnt1 = s.total_issued()
            if i == CHECK:
                e = s.skip_unless(S_P1)
                a(f"s_waitcnt vmcnt({min(63, s.total_issued() - s._cnt1)})")
                max3_chain(a, [f"v{T16+k}" for k in range(9)], f"v{TT}"); max3_chain(a, [f"v{T16+k}" for k in range(9, 16)] + [f"v{S8}"], f"v{TT+1}")
                Lok = a.newlabel("Lqok")
                a(f"v_max_u32 v{TT}, v{TT}, v{TT+1}\nv_cmp_eq_u32 vcc, -1, v{TT}\ns_cbranch_vccz {Lok}")
                keep = list(vq.q)
                s.poll_q(f"s{S_QOFF}")
                s.lane(f"v{X1}")
                a(f"v_lshlrev_b32 v{X1}, 2, v{X1}\ns_sub_u32 s{S_TMP}, s{S_QOFF}, {PH}")
                poll(a, lambda: a(f"buffer_load_dword v{S8}, v{X1}, {srd(SRD_WS)}, s{S_TMP} offen offset:{WS_Q} sc1"), [f"v{S8}"], [])
                vq.q = keep
                a.label(Lok)
                s.lane(f"v{X1}")
                a(f"s_lshl_b32 s{S_TMP}, s{S_WAVE}, 8\ns_add_u32 s{S_TMP}, s{S_TMP}, {SM+QBUF}\nv_lshlrev_b32 v{X1}, 2, v{X1}\nv_add_u32 v{X1}, s{S_TMP}, v{X1}")
                a(f"ds_write_b32 v{X1}, v{S8}\ns_waitcnt lgkmcnt(0)")
                Prof.mark(a, 3, f"v{X1}")
                a(f"s_mov_b32 s{S_P1}, 0\ns_mov_b32 s{S_DOA}, 0\ns_mov_b32 s{S_DOB}, 1\ns_branch L_it")
                e()
                a(f"s_mov_b32 s{S_DOA}, 1")
        Prof.mark(a, 8, f"v{X1}", S_IT, 16)
        e = s.skip_unless(S_IT)
        a(f"s_mov_b32 s{S_PID}, 0\ns_mov_b32 s{S_RET}, 1\ns_branch L_pub1")
        e()
        a.label("L_retA")
        a(f"s_xor_b32 s{S_DOB}, s{S_IT}, 1")
        tmp = VB(7)
        vq.wait("K60"); s.read_k(0, lambda st: vr(KT(12) + 4*st, 4)); lq.waitall()
        s.issue("V", 7, 0, 0, "V70")
        vq.wait("V60"); s.read_v([1], [lambda d: ar(VB(6) + 4*d, 2)]); lq.waitall()
        s.issue("V", 7, 1, 1, "V71")
        e = s.skip_unless(S_DOB)
        keep = list(vq.q)
        vq.wait("K61"); s.read_k(SL_K61, lambda st: ar(tmp + 4*st, 4)); lq.waitall()
        s.qk(lambda st: vr(KT(12) + 4*st, 4), lambda st: ar(tmp + 4*st, 4))
        s.softmax()
        vq.q = keep
        e()
        vq.wait("V61"); s.read_v([3], [lambda d: ar(VB(6) + 4*d + 2, 2)]); lq.waitall()
        s.issue("K", 7, 0, SL_K70, "K70")
        for i in range(9): a(f"s_sub_u32 s{S_ROW+i}, s{S_ROW+i}, {64<<20}")
        e = s.skip_unless(S_DOB)
        keep = list(vq.q)
        s.pv(lambda d: ar(VB(6) + 4*d, 4))
        s.read_k(SL_K71, lambda st: ar(tmp + 16 + 4*st, 4))
        vq.wait("K70"); s.read_k(SL_K70, lambda st: ar(tmp + 4*st, 4)); lq.waitall()
        s.qk(lambda st: ar(tmp + 4*st, 4), lambda st: ar(tmp + 16 + 4*st, 4))
        vq.q = keep
        e()
        vq.wait("V71")
        s.read_v([0, 1], [lambda d: ar(tmp + 4*d, 2), lambda d: ar(tmp + 4*d + 2, 2)])
        sblk = [6, 7] if D == 2 else [8, 6, 7]
        e = s.skip_unless(S_DOB)
        lq.waitall()
        vq.q = []
        for h in range(2): s.issue("K", sblk[0], h, h, ("SK", sblk[0], h), first_read=True)
        s.softmax()
        s.pv(lambda d: ar(tmp + 4*d, 4))
        Prof.mark(a, 9, f"v{X1}", S_IT, 16)
        a(f"s_mov_b32 s{S_PID}, 1\ns_mov_b32 s{S_RET}, 0\ns_branch L_pub1")
        a.label("L_retB")
        Prof.mark(a, 10, f"v{X1}", S_IT, 16)
        s.state_init()
        for bi, blk in enumerate(sblk):
            if bi + 1 < len(sblk):
                nb = sblk[bi+1]
                nxt = lambda nb=nb: [s.issue("K", nb, h, h, ("SK", nb, h), first_read=True) for h in range(2)]
            else:
                nxt = lambda: s.initial_issue([0])
            s.stream_block(blk, nxt)
        e()
        a("s_waitcnt lgkmcnt(0)")
        Prof.mark(a, 11, f"v{X1}", S_IT, 16)
        a(f"s_sub_u32 s{S_PID}, 3, s{S_IT}")
        s.q_soff(f"s{S_QOFF}", f"s{S_PID}")
        keepq = list(vq.q)
        s.poll_q(f"s{S_QOFF}")
        Prof.mark(a, 12, f"v{X1}", S_IT, 16)
        a(f"s_xor_b32 s{S_RET}, s{S_IT}, 1")
        vq.q = keepq
        s.pass2()
        Prof.mark(a, 13, f"v{X1}", S_IT, 16)
        s.combine_publish()
        Prof.mark(a, 14, f"v{X1}", S_IT, 16)
        a(f"s_cmp_lg_u32 s{S_IT}, 0\ns_cbranch_scc1 L_attn_end")
        assert vq.q == start_q, (vq.q, start_q)
        s.lane(f"v{X0}")
        a(f"v_lshrrev_b32 v{X0}, 4, v{X0}\nv_lshlrev_b32 v{X0}, 4, v{X0}\ns_lshl_b32 s{S_TMP}, s{S_WAVE}, 8\ns_add_u32 s{S_TMP}, s{S_TMP}, {SM+QBUF}\nv_add_u32 v{X0}, s{S_TMP}, v{X0}")
        for st in range(4):
            a(f"ds_read_b128 {vr(T16+4*st,4)}, v{X0} offset:{64*st}")
        a(f"s_waitcnt lgkmcnt(0)\ns_mov_b32 s{S_IT}, 1\ns_mov_b32 s{S_DOA}, 1\ns_mov_b32 s{S_DOB}, 1\ns_branch L_it")
        a.label("L_pub1")
        s.publish_compact()
        a(f"s_cmp_eq_u32 s{S_RET}, 0\ns_cbranch_scc1 L_retB\ns_branch L_retA")
        a.label("L_attn_end")
        a("s_waitcnt vmcnt(0)\ns_endpgm")

    def total_issued(s):
        return s.vq.total

_old_init = Q.__init__
def _init(self, a, name, cap):
    _old_init(self, a, name, cap); self.total = 0
_old_issue = Q.issue
def _issue(self, tag):
    _old_issue(self, tag); self.total = getattr(self, "total", 0) + 1
Q.__init__ = _init; Q.issue = _issue

def gen_attn2(a, **kw):
    Attn2(a, **kw).gen()
```

```python
import sys
from common_gen import *
from gen_chain import gen_chain
from gen_attn1 import gen_attn1
from gen_attn2 import gen_attn2

HEADER = open("cdna_kernels/" + NAME + ".s.ref").read().split("; Override launch geometry")[0]

def gen(variant="v1", pol="nt", prof="0", polv=None, order="1032", D="2", polre=None, rot="1"):
    Prof.on = prof == "1"
    a = Asm()
    kn = NAME + "_kernel"
    a.raw(HEADER.rstrip("\n"))
    a.raw("; @launch grid=(256,1,1) block=(256,1,1) lds=163840")
    a.raw('.amdgcn_target "amdgcn-amd-amdhsa--gfx950"\n.text')
    a.raw(f".globl {kn}\n.p2align 8\n.type {kn},@function\n{kn}:")
    a(f"s_cmp_ge_u32 s{S_WG}, 256\ns_cbranch_scc1 L_exit")
    a("s_load_dwordx16 s[16:31], s[0:1], 0\ns_load_dwordx8 s[32:39], s[0:1], 64\ns_load_dwordx2 s[40:41], s[0:1], 96")
    a("v_lshrrev_b32 v1, 6, v0")
    a(f"v_readfirstlane_b32 s{S_WAVE}, v1")
    a(f"s_mov_b32 s{S_BUD}, {POLL_BUDGET}")
    a("s_waitcnt lgkmcnt(0)")
    build_srd(a, SRD_WS, 40, 0x140000 if Prof.on else WS_SIZE)
    Prof.init(a)
    Prof.mark(a, 0, 'v47')
    build_srd(a, SRD_K, 18, 128 << 20)
    build_srd(a, SRD_V, 20, 128 << 20)
    build_srd(a, SRD_DBG, 38, 256)
    a(f"s_and_b32 s42, s{S_WG}, 7\ns_cmp_lg_u32 s42, 0\ns_cbranch_scc1 L_attn")
    build_srd(a, SRD_WQ, 22, 512*4096*2)
    build_srd(a, SRD_WO, 24, 512*4096*2)
    build_srd(a, SRD_W1, 28, 512*1792*2)
    build_srd(a, SRD_W2, 32, 512*1792*2)
    build_srd(a, SRD_X, 16, 2048)
    build_srd(a, SRD_B1, 30, 1792*2)
    build_srd(a, SRD_B2, 34, 1024)
    build_srd(a, SRD_OUT, 36, 2048)
    order = [int(c) for c in order]
    if variant == "v2": order = [1, 3, 0, 2]
    gen_chain(a, order)
    if variant == "v1": gen_attn1(a, order, pol, polv)
    else: gen_attn2(a, D=int(D), polk=pol, polv=pol if polv is None else polv, polre=polre, rot=int(rot))
    a.raw("L_exit:\ns_endpgm")
    a.raw('.section .rodata,"a"\n.p2align 6')
    a.raw(f".amdhsa_kernel {kn}\n  .amdhsa_next_free_vgpr 512\n  .amdhsa_next_free_sgpr 102\n  .amdhsa_accum_offset 256")
    a.raw("  .amdhsa_group_segment_fixed_size 0\n  .amdhsa_kernarg_size 104\n  .amdhsa_user_sgpr_count 2\n  .amdhsa_user_sgpr_kernarg_segment_ptr 1\n  .amdhsa_system_sgpr_workgroup_id_x 1\n.end_amdhsa_kernel")
    return a.text()

if __name__ == "__main__":
    out = sys.argv[1] if len(sys.argv) > 1 else "cdna_kernels/" + NAME + ".s"
    kw = dict(x.split("=") for x in sys.argv[2:])
    open(out, "w").write(gen(**kw))
    print("wrote", out)
```

```python
from common_gen import *
MF = "v_mfma_f32_16x16x32_bf16"
S_ROW = 34
S_HEAD = 80; S_WIDX = 82; S_IT = 83; S_DOA = 84; S_DOB = 85; S_P1 = 86; S_RET = 87
S_TMP = 88; S_TMP2 = 89; S_REG = 90; S_T3 = 91; S_PID = 92; S_DRY = 93; S_QOFF = 94
QBUF = 0
CNT = 1024
COMB = 1280; CSTR = 544
assert COMB + 5*4*CSTR <= 16384
T16 = 0; S8 = 16; QB8 = 24; ACC = 32; VM = 36; VL = 37; V_DE = 38; V_DO = 39; V_KA = 40; V_VA = 41
TT = 42
X0 = 46; X1 = 47
def KT(k): return 48 + 16*k
def VB(i): return 32*i
ROWB = 28*8192
SL_K8 = (5, 6); SL_V8 = (7, 8)
SL_K61 = 2; SL_K70 = 3; SL_K71 = 4

class Attn2:
    def __init__(s, a, D=2, polk="nt", polv="nt", polre=None, dry=False, rot=1):
        s.rot = rot
        s.a = a; s.D = D; s.polk = polk; s.polv = polv
        s.polre = polre
        s.dry = dry
        s.vq = Q(a, "vmcnt", 63)
        s.lq = Q(a, "lgkmcnt", 15)

    def lane(s, dst):
        s.a(f"v_mbcnt_lo_u32_b32 {dst}, -1, 0\nv_mbcnt_hi_u32_b32 {dst}, -1, {dst}")

    def issue(s, kind, blk, h, slot, tag, first_read=False):
        a = s.a
        pol = s.polk if kind == "K" else s.polv
        if first_read and s.polre is not None: pol = s.polre
        so = f"s{S_ROW+blk}"
        if h:
            a(f"s_add_u32 s{S_TMP}, {so}, 4096"); so = f"s{S_TMP}"
        a(f"s_add_u32 m0, s{S_REG}, {slot*4096}" if slot else f"s_mov_b32 m0, s{S_REG}")
        sn = SRD_K if kind == "K" else SRD_V
        for t in range(4):
            a(f"buffer_load_dwordx4 v{V_DE if t % 2 == 0 else V_DO}, {srd(sn)}, {so} offen offset:{t*1024} {pol} lds")
            s.vq.issue(tag)

    def read_k(s, slot, dst):
        a = s.a
        for st in range(4):
            if st == 0: ad = f"v{V_KA}"
            else:
                ad = f"v{X0 if st % 2 else X1}"
                a(f"v_xor_b32 {ad}, {st<<6}, v{V_KA}")
            a(f"ds_read_b128 {dst(st)}, {ad} offset:{slot*4096}"); s.lq.issue(("k", slot))

    def read_k2(s, slots, dsts):
        a = s.a
        for st in range(4):
            if st == 0: ad = f"v{V_KA}"
            else:
                ad = f"v{X0 if st % 2 else X1}"
                a(f"v_xor_b32 {ad}, {st<<6}, v{V_KA}")
            for slot, dst in zip(slots, dsts):
                a(f"ds_read_b128 {dst(st)}, {ad} offset:{slot*4096}"); s.lq.issue(("k", slot))

    def read_v(s, slots, dsts, dgs=range(8)):
        a = s.a
        for d in dgs:
            if d == 0: ad = f"v{V_VA}"
            else:
                ad = f"v{X0 if d % 2 else X1}"
                a(f"v_xor_b32 {ad}, {d<<5}, v{V_VA}")
            for slot, dst in zip(slots, dsts):
                a(f"ds_read_b64_tr_b16 {dst(d)}, {ad} offset:{slot*4096}"); s.lq.issue(("v", slot))

    def qk(s, A0, A1, S=S8):
        a = s.a
        for st in range(4):
            for (T, A) in ((0, A0), (1, A1)):
                C = "0" if st == 0 else vr(S + 4*T, 4)
                a(f"{MF} {vr(S+4*T,4)}, {A(st)}, {vr(T16+4*st,4)}, {C}")

    def softmax(s):
        a = s.a; S = S8; t = TT
        a(f"v_max3_f32 v{t}, v{S}, v{S+1}, v{S+2}")
        a(f"v_max3_f32 v{t+1}, v{S+4}, v{S+5}, v{S+6}")
        a(f"v_max3_f32 v{t}, v{t}, v{S+3}, v{S+7}")
        a(f"v_max3_f32 v{t}, v{t}, v{t+1}, v{VM}")
        for sw in ("v_permlane16_swap_b32", "v_permlane32_swap_b32"):
            a(f"v_mov_b32 v{t+1}, v{t}")
            a(f"{sw} v{t}, v{t+1}")
            a(f"v_max_f32 v{t}, v{t}, v{t+1}")
        a(f"v_sub_f32 v{t+1}, v{VM}, v{t}")
        a(f"v_exp_f32 v{t+1}, v{t+1}")
        a(f"v_mov_b32 v{VM}, v{t}")
        for k in range(8): a(f"v_sub_f32 v{S+k}, v{S+k}, v{t}")
        for k in range(8): a(f"v_exp_f32 v{S+k}, v{S+k}")
        a(f"v_mul_f32 v{VL}, v{VL}, v{t+1}")
        for k in range(4): a(f"v_mul_f32 v{ACC+k}, v{ACC+k}, v{t+1}")
        a(f"v_add_f32 v{t+2}, v{S}, v{S+1}\nv_add_f32 v{t+3}, v{S+2}, v{S+3}")
        a(f"v_add_f32 v{t+2}, v{t+2}, v{S+4}\nv_add_f32 v{t+3}, v{t+3}, v{S+5}")
        a(f"v_add_f32 v{t+2}, v{t+2}, v{S+6}\nv_add_f32 v{t+3}, v{t+3}, v{S+7}")
        a(f"v_add_f32 v{VL}, v{VL}, v{t+2}\nv_add_f32 v{VL}, v{VL}, v{t+3}")
        for k in range(4): a(f"v_cvt_pk_bf16_f32 v{S+k}, v{S+2*k}, v{S+2*k+1}")

    def pv(s, A, dgs=range(8), pre=None):
        a = s.a
        dgs = list(dgs)
        def mask(d):
            b = QB8 + 4*(d & 1)
            for k in range(4):
                a(f"v_cndmask_b32_e64 v{b+k}, 0, v{S8+k}, s[{S_MASK+2*d}:{S_MASK+2*d+1}]")
        mask(dgs[0])
        for i, d in enumerate(dgs):
            if i + 1 < len(dgs): mask(dgs[i+1])
            if pre: pre(d)
            a(f"{MF} {vr(ACC,4)}, {A(d)}, {vr(QB8 + 4*(d & 1),4)}, {vr(ACC,4)}")

    def state_init(s):
        a = s.a
        a(f"v_mov_b32 v{VM}, 0xff800000\nv_mov_b32 v{VL}, 0")
        for k in range(4): a(f"v_mov_b32 v{ACC+k}, 0")

    def skip_unless(s, sflag):
        a = s.a
        L = a.newlabel("Lsk")
        a(f"s_cmp_eq_u32 s{sflag}, 0\ns_cbranch_scc1 {L}")
        return lambda: a.label(L)

    def combine_publish(s):
        a = s.a
        x, y, z = f"v{X0}", f"v{X1}", f"v{TT}"
        a(f"s_lshl_b32 s{S_TMP}, s{S_PID}, 2\ns_add_u32 s{S_TMP}, s{S_TMP}, {SM+CNT}\nv_mov_b32 {x}, s{S_TMP}\nv_mov_b32 {y}, 1")
        a("s_waitcnt lgkmcnt(0)")
        set_exec(a, 1)
        a(f"ds_add_rtn_u32 {z}, {x}, {y}\ns_waitcnt lgkmcnt(0)")
        a(f"v_readfirstlane_b32 s{S_TMP}, {z}")
        set_exec(a, EX_ALL)
        Ls = a.newlabel("Lnopub")
        a(f"s_cmp_lg_u32 s{S_TMP}, 3\ns_cbranch_scc1 {Ls}")
        a(f"s_mul_i32 s{S_TMP}, s{S_PID}, {4*CSTR}\ns_add_u32 s{S_TMP}, s{S_TMP}, {SM+COMB}")
        a(f"s_lshl_b32 s{S_TMP2}, s{S_HEAD}, 3\ns_add_u32 s{S_TMP2}, s{S_TMP2}, s{S_WIDX}\ns_mul_i32 s{S_TMP2}, s{S_TMP2}, {PART_REC}")
        a(f"s_mul_i32 s{S_T3}, s{S_PID}, {PH}\ns_add_u32 s{S_TMP2}, s{S_TMP2}, s{S_T3}\ns_add_u32 s{S_TMP2}, s{S_TMP2}, {WS_PART}")
        s.lane(f"v{TT+1}")
        emit_combine_publish(a, f"v{TT+1}", f"s{S_TMP}", CSTR, 0, f"s{S_TMP2}")
        a.label(Ls)

    def rec_addr(s):
        a = s.a
        a(f"s_lshl_b32 s{S_TMP2}, s{S_PID}, 2\ns_add_u32 s{S_TMP2}, s{S_TMP2}, s{S_WAVE}\ns_mul_i32 s{S_TMP2}, s{S_TMP2}, {CSTR}\ns_add_u32 s{S_TMP2}, s{S_TMP2}, {SM+COMB}")

    def publish_compact(s):
        a = s.a
        class R: pass
        R.t = TT; R.l = VL; R.m = VM; R.acc = ACC
        s.rec_addr()
        s.lane(f"v{T16+2}")
        emit_partial_write(a, R, f"v{T16+2}", f"s{S_TMP2}", T16)
        s.combine_publish()

    def tile_of(s, n):
        i, r = divmod(n, 4)
        return ("K" if r < 2 else "V", i, r & 1)
    def ring_next(s, n):
        slot = n % 5
        m = n + 5
        if m < 24:
            k, i, h = s.tile_of(m)
            s.issue(k, i, h, slot, ("R", m))
        elif m == 24: s.issue("K", 7, 1, slot, "K71", first_read=False); assert slot == SL_K71
        elif m == 25: s.issue("K", 6, 0, slot, "K60"); assert slot == 0
        elif m == 26: s.issue("V", 6, 0, slot, "V60"); assert slot == 1
        elif m == 27: s.issue("K", 6, 1, slot, "K61"); assert slot == SL_K61
        elif m == 28: s.issue("V", 6, 1, slot, "V61"); assert slot == 3

    def move(s, n):
        a = s.a
        k, i, h = s.tile_of(n)
        slot = n % 5
        s.vq.wait(("R", n))
        if k == "K":
            s.read_k(slot, lambda st: vr(KT(2*i+h) + 4*st, 4))
        else:
            s.read_v([slot], [lambda d: ar(VB(i) + 4*d + 2*h, 2)])
        s.lq.waitall()
        s.ring_next(n)

    def initial_issue(s, which):
        def R(n):
            k, i, h = s.tile_of(n); s.issue(k, i, h, n % 5, ("R", n))
        for w in which:
            if w == 0: R(0); R(1)
            if w == 1: s.issue("K", 8, 0, SL_K8[0], "K80"); s.issue("K", 8, 1, SL_K8[1], "K81")
            if w == 2: R(2)
            if w == 3: R(3); R(4)
            if w == 4: s.issue("V", 8, 0, SL_V8[0], "V80"); s.issue("V", 8, 1, SL_V8[1], "V81")

    def block8(s):
        a = s.a
        tmp = VB(7)
        s.vq.wait("K81")
        s.read_k2(SL_K8, [lambda st: ar(tmp + 4*st, 4), lambda st: ar(tmp + 16 + 4*st, 4)])
        s.lq.waitall()
        s.qk(lambda st: ar(tmp + 4*st, 4), lambda st: ar(tmp + 16 + 4*st, 4))
        s.vq.wait("V81")
        s.read_v(SL_V8, [lambda d: ar(tmp + 4*d, 2), lambda d: ar(tmp + 4*d + 2, 2)])
        s.softmax()
        s.lq.waitall()
        s.pv(lambda d: ar(tmp + 4*d, 4))

    def poll_q(s, soff_text):
        a = s.a
        s.lane(f"v{X0}")
        a(f"v_lshrrev_b32 v{X0}, 4, v{X0}\nv_lshlrev_b32 v{X0}, 4, v{X0}")
        def loads():
            for st in range(4):
                a(f"buffer_load_dwordx4 {vr(T16+4*st,4)}, v{X0}, {srd(SRD_WS)}, {soff_text} offen offset:{WS_Q + 64*st} sc1")
        poll(a, loads, [f"v{T16+k}" for k in range(16)], [f"v{TT}", f"v{TT+1}"])
        s.vq.q = []

    def q_soff(s, dst, pid_text):
        a = s.a
        a(f"s_mul_i32 {dst}, {pid_text}, {PH}\ns_lshl_b32 s{S_TMP2}, s{S_HEAD}, 8\ns_add_u32 {dst}, {dst}, s{S_TMP2}")

    def stream_block(s, blk, nxt):
        a = s.a; lq = s.lq; vq = s.vq
        qa = f"v{TT+3}"
        s.lane(qa)
        a(f"v_lshrrev_b32 {qa}, 4, {qa}\nv_lshlrev_b32 {qa}, 4, {qa}\ns_lshl_b32 s{S_TMP}, s{S_WAVE}, 8\ns_add_u32 s{S_TMP}, s{S_TMP}, {SM+QBUF}\nv_add_u32 {qa}, s{S_TMP}, {qa}")
        def qread(st, buf):
            a(f"ds_read_b128 {vr(QB8+4*buf,4)}, {qa} offset:{64*st}"); lq.issue(("q", buf))
        for h in range(2):
            vq.wait(("SK", blk, h))
            s.read_k(h, lambda st: vr(T16 + 4*st, 4))
            qread(0, 0); qread(1, 1)
            lq.wait(("k", h))
            s.issue("V", blk, h, h, ("SV", blk, h), first_read=True)
            for st in range(4):
                lq.wait(("q", st & 1))
                C = "0" if st == 0 else vr(S8 + 4*h, 4)
                a(f"{MF} {vr(S8+4*h,4)}, {vr(T16+4*st,4)}, {vr(QB8+4*(st&1),4)}, {C}")
                if st < 2: qread(st + 2, st & 1)
        s.softmax()
        vq.wait(("SV", blk, 1))
        for r in range(2):
            dg = range(4*r, 4*r + 4)
            s.read_v([0, 1], [lambda d: vr(T16 + 4*(d & 3), 2), lambda d: vr(T16 + 4*(d & 3) + 2, 2)], dg)
            lq.waitall()
            if r == 1: nxt()
            s.pv(lambda d: vr(T16 + 4*(d & 3), 4), dg)

    def pass2(s):
        a = s.a; lq = s.lq
        Sreg = {0: S8, 1: QB8, 2: KT(3), 3: KT(3)+8, 4: KT(6), 5: KT(6)+8, 8: KT(7), 6: KT(7)+8, 7: KT(8)}
        WACC = KT(9); LACC = KT(11); ONES = KT(11) + 4; NM = KT(11) + 8; MX = KT(11) + 10
        def V(k): return lambda st: vr(KT(k) + 4*st, 4)
        def restart(w):
            end = s.skip_unless(S_RET)
            s.initial_issue([w])
            end()
        t = TT
        maxq = []
        first = [True]
        def maxops(b):
            S = Sreg[b]
            if first[0]:
                first[0] = False
                return [f"v_max3_f32 v{t}, v{S}, v{S+1}, v{S+2}", f"v_max3_f32 v{t+1}, v{S+3}, v{S+4}, v{S+5}",
                        f"v_max3_f32 v{t}, v{t}, v{S+6}, v{S+7}"]
            return [f"v_max3_f32 v{t}, v{t}, v{S}, v{S+1}", f"v_max3_f32 v{t+1}, v{t+1}, v{S+2}, v{S+3}",
                    f"v_max3_f32 v{t}, v{t}, v{S+4}, v{S+5}", f"v_max3_f32 v{t+1}, v{t+1}, v{S+6}, v{S+7}"]
        def pair(b, A0, A1, shadow):
            S = Sreg[b]
            shadow = list(shadow)
            for st in range(4):
                for (T, A) in ((0, A0), (1, A1)):
                    C = "0" if st == 0 else vr(S + 4*T, 4)
                    a(f"{MF} {vr(S+4*T,4)}, {A(st)}, {vr(T16+4*st,4)}, {C}")
                    if st >= 2 and shadow: a(shadow.pop(0))
            for l in shadow: a(l)
        pair(0, V(0), V(1), [])
        s.read_k2(SL_K8, [V(0), V(1)])
        pair(1, V(2), V(3), [])
        s.read_k(SL_K61, V(2))
        pair(2, V(4), V(5), maxops(0))
        lq.wait(("k", SL_K8[1]))
        restart(1)
        s.read_k2((SL_K70, SL_K71), [V(4), V(5)])
        pair(3, V(6), V(7), maxops(1))
        lq.wait(("k", SL_K61))
        restart(2)
        pair(4, V(8), V(9), maxops(2))
        lq.wait(("k", SL_K71))
        restart(3)
        pair(5, V(10), V(11), maxops(3))
        pair(8, V(0), V(1), maxops(4))
        s.read_v(SL_V8, [lambda d: vr(KT(0) + 4*d, 2), lambda d: vr(KT(0) + 4*d + 2, 2)], range(4))
        pair(6, V(12), V(2), maxops(5))
        s.read_v(SL_V8, [lambda d: vr(KT(0) + 4*d, 2), lambda d: vr(KT(0) + 4*d + 2, 2)], range(4, 8))
        pair(7, V(4), V(5), maxops(8))
        for k in range(4): a(f"v_mov_b32 v{ONES+k}, 0x3f803f80")
        for l in maxops(6): a(l)
        lq.waitall()
        restart(4)
        for l in maxops(7): a(l)
        a(f"v_max_f32 v{t}, v{t}, v{t+1}")
        for sw in ("v_permlane16_swap_b32", "v_permlane32_swap_b32"):
            a(f"v_mov_b32 v{t+1}, v{t}")
            a(f"{sw} v{t}, v{t+1}")
            a(f"v_max_f32 v{t}, v{t}, v{t+1}")
        a(f"v_sub_f32 v{NM}, 0, v{t}\nv_sub_f32 v{NM+1}, 0, v{t}\nv_mov_b32 v{MX}, v{t}")
        order = [0, 1, 2, 3, 4, 5, 8, 6, 7]
        def Vop(b):
            if b == 8: return lambda d: vr(KT(0) + 4*d, 4)
            return lambda d: ar(VB(b) + 4*d, 4)
        def prob(b):
            S = Sreg[b]
            L = [f"v_pk_add_f32 {vr(S+2*k,2)}, {vr(S+2*k,2)}, {vr(NM,2)}" for k in range(4)]
            L += [f"v_exp_f32 v{S+k}, v{S+k}" for k in range(8)]
            L += [f"v_cvt_pk_bf16_f32 v{S+k}, v{S+2*k}, v{S+2*k+1}" for k in range(4)]
            return L
        for l in prob(order[0]): a(l)
        for i, b in enumerate(order):
            sh = prob(order[i+1]) if i + 1 < len(order) else []
            S = Sreg[b]
            for d in range(8):
                C = "0" if i == 0 else vr(WACC + 4*d, 4)
                a(f"{MF} {vr(WACC+4*d,4)}, {Vop(b)(d)}, {vr(S,4)}, {C}")
                for _ in range(2):
                    if sh: a(sh.pop(0))
            C = "0" if i == 0 else vr(LACC, 4)
            a(f"{MF} {vr(LACC,4)}, {vr(ONES,4)}, {vr(S,4)}, {C}")
        s.rec_addr()
        s.lane(f"v{X0}")
        a(f"v_lshrrev_b32 v{X0}, 4, v{X0}\nv_lshlrev_b32 v{X0}, 4, v{X0}\nv_add_u32 v{X0}, s{S_TMP2}, v{X0}")
        a(f"v_mov_b32 v{X1}, s{S_TMP2}")
        a(f"v_mov_b32 v{MX+1}, v{LACC}")
        set_exec(a, EX_N0)
        for d in range(8):
            a(f"ds_write_b128 v{X0}, {vr(WACC+4*d,4)} offset:{64*d}")
        set_exec(a, 1)
        a(f"ds_write_b64 v{X1}, {vr(MX,2)} offset:512")
        set_exec(a, EX_ALL)

    def gen(s):
        a = s.a; vq = s.vq; lq = s.lq; D = s.D
        a.label("L_attn")
        a(f"s_lshr_b32 s{S_HEAD}, s{S_WG}, 3\ns_and_b32 s{S_WIDX}, s{S_WG}, 7\ns_sub_u32 s{S_WIDX}, s{S_WIDX}, 1")
        a(f"s_lshl_b32 s{S_T3}, s{S_WIDX}, 2\ns_add_u32 s{S_T3}, s{S_T3}, s{S_WAVE}")
        a(f"s_mul_i32 s{S_REG}, s{S_WAVE}, {WREG}")
        a(f"v_and_b32 v0, 63, v0")
        emit_dma_voff(a, f"v{V_DE}", f"v{V_DO}", "v0", "v1", "v2")
        if s.rot == 0: a(f"s_mov_b32 s{S_TMP}, 0")
        elif s.rot == 1: a(f"s_add_u32 s{S_TMP}, s{S_HEAD}, s{S_T3}")
        elif s.rot == 2: a(f"s_mov_b32 s{S_TMP}, s{S_HEAD}")
        elif s.rot == 3: a(f"s_mov_b32 s{S_TMP}, s{S_WIDX}")
        elif s.rot == 4: a(f"s_lshr_b32 s{S_TMP}, s{S_HEAD}, 3")
        a(f"s_mul_i32 s{S_TMP2}, s{S_TMP}, 7282\ns_lshr_b32 s{S_TMP2}, s{S_TMP2}, 16\ns_mul_i32 s{S_TMP2}, s{S_TMP2}, 9\ns_sub_u32 s{S_TMP}, s{S_TMP}, s{S_TMP2}")
        a(f"s_lshl_b32 s{S_TMP2}, s{S_HEAD}, 21\ns_lshl_b32 s{S_T3}, s{S_T3}, 13\ns_add_u32 s{S_T3}, s{S_T3}, s{S_TMP2}\ns_add_u32 s{S_T3}, s{S_T3}, {64<<20}")
        for i in range(9):
            a(f"s_mul_i32 s{S_ROW+i}, s{S_TMP}, {ROWB}\ns_add_u32 s{S_ROW+i}, s{S_ROW+i}, s{S_T3}")
            if i < 8: a(f"s_add_u32 s{S_TMP}, s{S_TMP}, 1\ns_cmp_eq_u32 s{S_TMP}, 9\ns_cselect_b32 s{S_TMP}, 0, s{S_TMP}")
        s.initial_issue([0, 1, 2, 3, 4])
        class R: pass
        R.ka = [V_KA, 4, 5, 6]; R.va = [V_VA] + list(range(8, 15))
        emit_lds_addrs(a, R, "v0", f"s{S_REG}", "v1", "v2")
        emit_masks(a)
        a(f"v_lshlrev_b32 v1, 2, v0\nv_add_u32 v1, {SM+CNT}, v1\nv_mov_b32 v2, 0")
        set_exec(a, 0xff)
        a("ds_write_b32 v1, v2")
        set_exec(a, EX_ALL)
        a("s_waitcnt lgkmcnt(0)\ns_barrier")
        Prof.mark(a, 1, f"v{X1}")
        s.state_init()
        a(f"s_mov_b32 s{S_IT}, 0\ns_mov_b32 s{S_DOA}, 1\ns_mov_b32 s{S_DOB}, 0\ns_mov_b32 s{S_P1}, 1")
        start_q = list(vq.q)
        a.label("L_it")
        CHECK = 4
        for i in range(6):
            e = s.skip_unless(S_DOA); s.move(4*i); s.move(4*i + 1); e()
            if i == 2 and D == 2:
                e = s.skip_unless(S_DOB); s.block8(); e()
            if i == 2 and D == 3:
                a(f"s_xor_b32 s{S_TMP}, s{S_IT}, 1\ns_and_b32 s{S_T3}, s{S_TMP}, s{S_DOB}")
                e = s.skip_unless(S_T3); s.block8(); e()
            e = s.skip_unless(S_DOB)
            s.qk(lambda st: vr(KT(2*i) + 4*st, 4), lambda st: vr(KT(2*i+1) + 4*st, 4))
            s.softmax()
            e()
            e = s.skip_unless(S_DOA); s.move(4*i + 2); s.move(4*i + 3); e()
            e = s.skip_unless(S_DOB); s.pv(lambda d: ar(VB(i) + 4*d, 4)); e()
            if i == 0:
                e = s.skip_unless(S_P1)
                a(f"buffer_load_dword v{S8}, off, {srd(SRD_DBG)}, 0 sc1")
                e()
                s._cnt0 = s.total_issued()
            if i == 2:
                e = s.skip_unless(S_P1)
                a(f"s_waitcnt vmcnt({min(63, s.total_issued() - s._cnt0)})")
                Lok = a.newlabel("Larrok")
                a(f"v_and_b32 v{S8}, 63, v{S8}\nv_cmp_ne_u32 vcc, 32, v{S8}\ns_cbranch_vccz {Lok}")
                from gen_chain import wait_arrival
                wait_arrival(a, [f"v{S8}", f"v{S8+1}", f"v{S8+2}"])
                a.label(Lok)
                Prof.mark(a, 2, f"v{X1}")
                s.q_soff(f"s{S_QOFF}", "1")
                s.lane(f"v{X0}")
                a(f"v_lshlrev_b32 v{X1}, 2, v{X0}\nv_lshrrev_b32 v{X0}, 4, v{X0}\nv_lshlrev_b32 v{X0}, 4, v{X0}")
                for st in range(4):
                    a(f"buffer_load_dwordx4 {vr(T16+4*st,4)}, v{X0}, {srd(SRD_WS)}, s{S_QOFF} offen offset:{WS_Q + 64*st} sc1")
                a(f"s_sub_u32 s{S_TMP}, s{S_QOFF}, {PH}")
                a(f"buffer_load_dword v{S8}, v{X1}, {srd(SRD_WS)}, s{S_TMP} offen offset:{WS_Q} sc1")
                e()
                s._cnt1 = s.total_issued()
            if i == CHECK:
                e = s.skip_unless(S_P1)
                a(f"s_waitcnt vmcnt({min(63, s.total_issued() - s._cnt1)})")
                max3_chain(a, [f"v{T16+k}" for k in range(9)], f"v{TT}"); max3_chain(a, [f"v{T16+k}" for k in range(9, 16)] + [f"v{S8}"], f"v{TT+1}")
                Lok = a.newlabel("Lqok")
                a(f"v_max_u32 v{TT}, v{TT}, v{TT+1}\nv_cmp_eq_u32 vcc, -1, v{TT}\ns_cbranch_vccz {Lok}")
                keep = list(vq.q)
                s.poll_q(f"s{S_QOFF}")
                s.lane(f"v{X1}")
                a(f"v_lshlrev_b32 v{X1}, 2, v{X1}\ns_sub_u32 s{S_TMP}, s{S_QOFF}, {PH}")
                poll(a, lambda: a(f"buffer_load_dword v{S8}, v{X1}, {srd(SRD_WS)}, s{S_TMP} offen offset:{WS_Q} sc1"), [f"v{S8}"], [])
                vq.q = keep
                a.label(Lok)
                s.lane(f"v{X1}")
                a(f"s_lshl_b32 s{S_TMP}, s{S_WAVE}, 8\ns_add_u32 s{S_TMP}, s{S_TMP}, {SM+QBUF}\nv_lshlrev_b32 v{X1}, 2, v{X1}\nv_add_u32 v{X1}, s{S_TMP}, v{X1}")
                a(f"ds_write_b32 v{X1}, v{S8}\ns_waitcnt lgkmcnt(0)")
                Prof.mark(a, 3, f"v{X1}")
                a(f"s_mov_b32 s{S_P1}, 0\ns_mov_b32 s{S_DOA}, 0\ns_mov_b32 s{S_DOB}, 1\ns_branch L_it")
                e()
                a(f"s_mov_b32 s{S_DOA}, 1")
        Prof.mark(a, 8, f"v{X1}", S_IT, 16)
        e = s.skip_unless(S_IT)
        a(f"s_mov_b32 s{S_PID}, 0\ns_mov_b32 s{S_RET}, 1\ns_branch L_pub1")
        e()
        a.label("L_retA")
        a(f"s_xor_b32 s{S_DOB}, s{S_IT}, 1")
        tmp = VB(7)
        vq.wait("K60"); s.read_k(0, lambda st: vr(KT(12) + 4*st, 4)); lq.waitall()
        s.issue("V", 7, 0, 0, "V70")
        vq.wait("V60"); s.read_v([1], [lambda d: ar(VB(6) + 4*d, 2)]); lq.waitall()
        s.issue("V", 7, 1, 1, "V71")
        e = s.skip_unless(S_DOB)
        keep = list(vq.q)
        vq.wait("K61"); s.read_k(SL_K61, lambda st: ar(tmp + 4*st, 4)); lq.waitall()
        s.qk(lambda st: vr(KT(12) + 4*st, 4), lambda st: ar(tmp + 4*st, 4))
        s.softmax()
        vq.q = keep
        e()
        vq.wait("V61"); s.read_v([3], [lambda d: ar(VB(6) + 4*d + 2, 2)]); lq.waitall()
        s.issue("K", 7, 0, SL_K70, "K70")
        for i in range(9): a(f"s_sub_u32 s{S_ROW+i}, s{S_ROW+i}, {64<<20}")
        e = s.skip_unless(S_DOB)
        keep = list(vq.q)
        s.pv(lambda d: ar(VB(6) + 4*d, 4))
        s.read_k(SL_K71, lambda st: ar(tmp + 16 + 4*st, 4))
        vq.wait("K70"); s.read_k(SL_K70, lambda st: ar(tmp + 4*st, 4)); lq.waitall()
        s.qk(lambda st: ar(tmp + 4*st, 4), lambda st: ar(tmp + 16 + 4*st, 4))
        vq.q = keep
        e()
        vq.wait("V71")
        s.read_v([0, 1], [lambda d: ar(tmp + 4*d, 2), lambda d: ar(tmp + 4*d + 2, 2)])
        sblk = [6, 7] if D == 2 else [8, 6, 7]
        e = s.skip_unless(S_DOB)
        lq.waitall()
        vq.q = []
        for h in range(2): s.issue("K", sblk[0], h, h, ("SK", sblk[0], h), first_read=True)
        s.softmax()
        s.pv(lambda d: ar(tmp + 4*d, 4))
        Prof.mark(a, 9, f"v{X1}", S_IT, 16)
        a(f"s_mov_b32 s{S_PID}, 1\ns_mov_b32 s{S_RET}, 0\ns_branch L_pub1")
        a.label("L_retB")
        Prof.mark(a, 10, f"v{X1}", S_IT, 16)
        s.state_init()
        for bi, blk in enumerate(sblk):
            if bi + 1 < len(sblk):
                nb = sblk[bi+1]
                nxt = lambda nb=nb: [s.issue("K", nb, h, h, ("SK", nb, h), first_read=True) for h in range(2)]
            else:
                nxt = lambda: s.initial_issue([0])
            s.stream_block(blk, nxt)
        e()
        a("s_waitcnt lgkmcnt(0)")
        Prof.mark(a, 11, f"v{X1}", S_IT, 16)
        a(f"s_sub_u32 s{S_PID}, 3, s{S_IT}")
        s.q_soff(f"s{S_QOFF}", f"s{S_PID}")
        keepq = list(vq.q)
        s.poll_q(f"s{S_QOFF}")
        Prof.mark(a, 12, f"v{X1}", S_IT, 16)
        a(f"s_xor_b32 s{S_RET}, s{S_IT}, 1")
        vq.q = keepq
        s.pass2()
        Prof.mark(a, 13, f"v{X1}", S_IT, 16)
        s.combine_publish()
        Prof.mark(a, 14, f"v{X1}", S_IT, 16)
        a(f"s_cmp_lg_u32 s{S_IT}, 0\ns_cbranch_scc1 L_attn_end")
        assert vq.q == start_q, (vq.q, start_q)
        s.lane(f"v{X0}")
        a(f"v_lshrrev_b32 v{X0}, 4, v{X0}\nv_lshlrev_b32 v{X0}, 4, v{X0}\ns_lshl_b32 s{S_TMP}, s{S_WAVE}, 8\ns_add_u32 s{S_TMP}, s{S_TMP}, {SM+QBUF}\nv_add_u32 v{X0}, s{S_TMP}, v{X0}")
        for st in range(4):
            a(f"ds_read_b128 {vr(T16+4*st,4)}, v{X0} offset:{64*st}")
        a(f"s_waitcnt lgkmcnt(0)\ns_mov_b32 s{S_IT}, 1\ns_mov_b32 s{S_DOA}, 1\ns_mov_b32 s{S_DOB}, 1\ns_branch L_it")
        a.label("L_pub1")
        s.publish_compact()
        a(f"s_cmp_eq_u32 s{S_RET}, 0\ns_cbranch_scc1 L_retB\ns_branch L_retA")
        a.label("L_attn_end")
        a("s_waitcnt vmcnt(0)\ns_endpgm")

    def total_issued(s):
        return s.vq.total

_old_init = Q.__init__
def _init(self, a, name, cap):
    _old_init(self, a, name, cap); self.total = 0
_old_issue = Q.issue
def _issue(self, tag):
    _old_issue(self, tag); self.total = getattr(self, "total", 0) + 1
Q.__init__ = _init; Q.issue = _issue

def gen_attn2(a, **kw):
    Attn2(a, **kw).gen()
```

```python
from common_gen import *

XB_O = 0; XB_1 = 1024; XB_Q = 2048; X1F = 3072; STAT1 = 5120; STATQ = 5152; RED = 5184
QB = 5440; HB = 6144; CCOMB = 10240; CSTR = 544
S_C = 80; S_T = 82; S_PID = 83; S_B = 84; S_LAYER = 85; S_PH = 86; S_TMP = 87; S_TMP2 = 88; S_REG = 89
S_HG = 90; S_CG = 91; S_T3 = 92; S_T4 = 93; S_QPH = 94; S_DRY = 95; S_CC = 96
V_TID = 0; V_LANE = 1; V_B = 2; V_T4 = 3; V_T8 = 4; V_X1W = 5
V_XR = 6
V_CSQ = 10
V_CS1 = 18
V_B1 = 22
V_B2 = 26
V_PO = 27; V_PML = 28
V_G16 = 29
V_XC = 30
V_G8 = 32
V_HBW = 33; V_HBR = 34; V_RDW = 35; V_RDR = 36; V_L16 = 37; V_XBO = 38; V_L4 = 39
class CR(BlkRegs):
    ka = [40, 41, 42, 43]; va = [44, 45, 46, 47, 48, 49, 50, 51]
    q = 52; S = 68; acc = 76; m = 80; l = 81; t = 82; bm = 88; T = 96
V_DE = 86; V_DO = 87
TMP = 96
BT = 64
A_WQ = 0; A_WO = 128; V_W1 = 192; V_W2 = 136
MF = "v_mfma_f32_16x16x32_bf16"

def issue_seg64(a, vq, tag, srdn, rowstride, s_off0, half):
    t0, t1 = f"v{TMP}", f"v{TMP+1}"
    a(f"v_lshrrev_b32 {t0}, 2, v{V_LANE}\nv_mul_u32_u24 {t0}, {rowstride}, {t0}")
    a(f"v_and_b32 {t1}, 3, v{V_LANE}\nv_lshlrev_b32 {t1}, 4, {t1}\nv_add_u32 {t0}, {t0}, {t1}")
    a(f"s_add_u32 s{S_TMP}, s{S_REG}, {half*16384}\ns_add_u32 s{S_TMP2}, {s_off0}, {half*256*rowstride}\ns_mov_b32 s{S_T3}, 16")
    L = a.newlabel("Lw64")
    a.label(L)
    a(f"s_mov_b32 m0, s{S_TMP}")
    a(f"buffer_load_dwordx4 {t0}, {srd(srdn)}, s{S_TMP2} offen lds")
    a(f"s_add_u32 s{S_TMP}, s{S_TMP}, 1024\ns_add_u32 s{S_TMP2}, s{S_TMP2}, {16*rowstride}")
    a(f"s_sub_u32 s{S_T3}, s{S_T3}, 1\ns_cmp_lg_u32 s{S_T3}, 0\ns_cbranch_scc1 {L}")
    for _ in range(16): vq.issue(tag)

def read_seg64(a, abase, half):
    t0, t1 = f"v{TMP}", f"v{TMP+1}"
    a(f"v_lshrrev_b32 {t0}, 4, v{V_LANE}\nv_lshlrev_b32 {t0}, 3, {t0}")
    a(f"v_bfe_u32 {t1}, v{V_LANE}, 2, 2\nv_add_u32 {t0}, {t0}, {t1}\nv_lshlrev_b32 {t0}, 6, {t0}")
    a(f"v_and_b32 {t1}, 3, v{V_LANE}\nv_lshlrev_b32 {t1}, 3, {t1}\nv_add_u32 {t0}, {t0}, {t1}")
    a(f"v_add_u32 {t0}, s{S_REG}, {t0}")
    for ct in range(2):
        for s in range(8*half, 8*half + 8):
            for h in range(2):
                r = abase + (ct*16 + s)*4 + 2*h
                a(f"ds_read_b64_tr_b16 {ar(r,2)}, {t0} offset:{s*2048 + h*256 + ct*32}")
    a("s_waitcnt lgkmcnt(0)")

def issue_w1(a, vq):
    t0, t1 = f"v{TMP}", f"v{TMP+1}"
    a(f"v_lshrrev_b32 {t0}, 1, v{V_LANE}\nv_mul_u32_u24 {t0}, 3584, {t0}")
    a(f"v_and_b32 {t1}, 1, v{V_LANE}\nv_lshlrev_b32 {t1}, 4, {t1}\nv_add_u32 {t0}, {t0}, {t1}")
    a(f"s_lshl_b32 s{S_TMP2}, s{S_CC}, 2\ns_add_u32 s{S_TMP2}, s{S_TMP2}, s{S_WAVE}\ns_lshl_b32 s{S_TMP2}, s{S_TMP2}, 5")
    a(f"s_mov_b32 s{S_TMP}, s{S_REG}\ns_mov_b32 s{S_T3}, 16")
    L = a.newlabel("Lw1"); a.label(L)
    a(f"s_mov_b32 m0, s{S_TMP}")
    a(f"buffer_load_dwordx4 {t0}, {srd(SRD_W1)}, s{S_TMP2} offen lds")
    a(f"s_add_u32 s{S_TMP}, s{S_TMP}, 1024\ns_add_u32 s{S_TMP2}, s{S_TMP2}, {32*3584}")
    a(f"s_sub_u32 s{S_T3}, s{S_T3}, 1\ns_cmp_lg_u32 s{S_T3}, 0\ns_cbranch_scc1 {L}")
    for _ in range(16): vq.issue("w1")

def issue_w2(a, vq):
    t0, t1 = f"v{TMP}", f"v{TMP+1}"
    a(f"v_lshrrev_b32 {t0}, 1, v{V_LANE}\nv_mul_u32_u24 {t0}, 1024, {t0}")
    a(f"v_and_b32 {t1}, 1, v{V_LANE}\nv_lshlrev_b32 {t1}, 4, {t1}\nv_add_u32 {t0}, {t0}, {t1}")
    a(f"s_mul_i32 s{S_TMP2}, s{S_WAVE}, {448*1024}\ns_lshl_b32 s{S_T4}, s{S_C}, 5\ns_add_u32 s{S_TMP2}, s{S_TMP2}, s{S_T4}")
    a(f"s_add_u32 s{S_TMP}, s{S_REG}, 16384\ns_mov_b32 s{S_T3}, 14")
    L = a.newlabel("Lw2"); a.label(L)
    a(f"s_mov_b32 m0, s{S_TMP}")
    a(f"buffer_load_dwordx4 {t0}, {srd(SRD_W2)}, s{S_TMP2} offen lds")
    a(f"s_add_u32 s{S_TMP}, s{S_TMP}, 1024\ns_add_u32 s{S_TMP2}, s{S_TMP2}, {32*1024}")
    a(f"s_sub_u32 s{S_T3}, s{S_T3}, 1\ns_cmp_lg_u32 s{S_T3}, 0\ns_cbranch_scc1 {L}")
    for _ in range(14): vq.issue("w2")

def read_w12(a, base, nstep, ldsoff):
    t0, t1 = f"v{TMP}", f"v{TMP+1}"
    a(f"v_lshrrev_b32 {t0}, 4, v{V_LANE}\nv_lshlrev_b32 {t0}, 3, {t0}")
    a(f"v_bfe_u32 {t1}, v{V_LANE}, 2, 2\nv_add_u32 {t0}, {t0}, {t1}\nv_lshlrev_b32 {t0}, 5, {t0}")
    a(f"v_and_b32 {t1}, 3, v{V_LANE}\nv_lshlrev_b32 {t1}, 3, {t1}\nv_add_u32 {t0}, {t0}, {t1}")
    a(f"v_add_u32 {t0}, s{S_REG}, {t0}")
    for s in range(nstep):
        for h in range(2):
            a(f"ds_read_b64_tr_b16 {vr(base + s*4 + 2*h,2)}, {t0} offset:{ldsoff + s*1024 + h*128}")
    a("s_waitcnt lgkmcnt(0)")

S_FAST = 34
FASTPATH = [True]
def store2(a, lines):
    if not FASTPATH[0]:
        for l in lines: a(l + " sc1")
        return
    Ls = a.newlabel("Lsts"); Le = a.newlabel("Lste")
    a(f"s_cmp_eq_u32 s{S_FAST}, 0\ns_cbranch_scc1 {Ls}")
    for l in lines: a(l)
    a(f"s_branch {Le}")
    a.label(Ls)
    for l in lines: a(l + " sc1")
    a.label(Le)

def colsum(a, A, ntile, nstep, dst):
    ones = TMP
    for k in range(4): a(f"v_mov_b32 v{ones+k}, 0x3f803f80")
    for s in range(nstep):
        for ct in range(ntile):
            C = "0" if s == 0 else vr(dst + 4*ct, 4)
            a(f"{MF} {vr(dst+4*ct,4)}, {A(ct,s)}, {vr(ones,4)}, {C}")

def gemv(a, lq, A, ntile, nstep, D, baddr, boff, pre=None, shadow=None):
    shadow = list(shadow or [])
    ahead = min(nstep, 13)
    for s in range(ahead):
        a(f"ds_read_b128 {vr(BT+4*s,4)}, {baddr} offset:{boff + 64*s}"); lq.issue(("b", s))
    if pre: pre()
    for s in range(nstep):
        if s + ahead < nstep:
            sn = s + ahead
            a(f"ds_read_b128 {vr(BT+4*sn,4)}, {baddr} offset:{boff + 64*sn}"); lq.issue(("b", sn))
        lq.wait(("b", s))
        for ct in range(ntile):
            C = "0" if s == 0 else vr(D + 4*ct, 4)
            a(f"{MF} {vr(D+4*ct,4)}, {A(ct,s)}, {vr(BT+4*s,4)}, {C}")
            for _ in range(2):
                if shadow: a(shadow.pop(0))
    for l in shadow: a(l)

def x_to_lds_stats(a, xb, stat, f32copy):
    t = TMP
    x0, x1 = f"v{V_XC}", f"v{V_XC+1}"
    a(f"v_cvt_pk_bf16_f32 v{t+2}, {x0}, {x1}")
    a(f"v_add_f32 v{t}, {x0}, {x1}\nv_mul_f32 v{t+1}, {x0}, {x0}")
    a(f"ds_write_b32 v{V_T4}, v{t+2} offset:{xb}")
    a(f"v_fmac_f32 v{t+1}, {x1}, {x1}")
    if f32copy:
        a(f"ds_write_b64 v{V_X1W}, {vr(V_XC,2)} offset:{X1F}")
    for k in (1, 2, 4, 8):
        a(f"v_add_f32_dpp v{t}, v{t}, v{t} row_shr:{k} row_mask:0xf bank_mask:0xf")
        a(f"v_add_f32_dpp v{t+1}, v{t+1}, v{t+1} row_shr:{k} row_mask:0xf bank_mask:0xf")
    for (bc, rm) in ((15, "0xa"), (31, "0xc")):
        a(f"v_add_f32_dpp v{t}, v{t}, v{t} row_bcast:{bc} row_mask:{rm} bank_mask:0xf")
        a(f"v_add_f32_dpp v{t+1}, v{t+1}, v{t+1} row_bcast:{bc} row_mask:{rm} bank_mask:0xf")
    a(f"s_lshl_b32 s{S_TMP}, s{S_WAVE}, 3\ns_add_u32 s{S_TMP}, s{S_TMP}, {SM + stat}\nv_mov_b32 v{t+2}, s{S_TMP}")
    set_exec(a, 1 << 63)
    a(f"ds_write_b64 v{t+2}, {vr(t,2)}")
    set_exec(a, EX_ALL)
    a("s_waitcnt lgkmcnt(0)\ns_barrier")

V_MEAN = 132; V_RSTD = 133
def stat_reads(a, lq, stat):
    st = 128
    a(f"v_mov_b32 v{st+7}, {SM}")
    a(f"ds_read_b128 {vr(st-0,4)}, v{st+7} offset:{stat}"); lq.issue("st0")
    a(f"ds_read_b128 {vr(60,4)}, v{st+7} offset:{stat+16}"); lq.issue("st1")
def stat_shadow():
    st = 128
    return [
        f"v_add_f32 v128, v128, v130", f"v_add_f32 v129, v129, v131",
        f"v_add_f32 v60, v60, v62", f"v_add_f32 v61, v61, v63",
        f"v_add_f32 v128, v128, v60", f"v_add_f32 v129, v129, v61",
        f"v_mul_f32 v{V_MEAN}, {f2h(1/512)}, v128", f"v_mul_f32 v129, {f2h(1/512)}, v129",
        f"v_fma_f32 v129, -v{V_MEAN}, v{V_MEAN}, v129", f"v_add_f32 v129, {f2h(1e-5)}, v129",
        f"v_max_f32 v129, {f2h(1e-5)}, v129",
        f"v_rsq_f32 v{V_RSTD}, v129",
    ]

def stage_O(a):
    a.comment("---- stage O: combine partials, o @ wo")
    T = BT
    O = T; ML = T + 16; M = T + 24; E = T + 25; Lr = T + 29; t = T + 30
    a(f"s_lshl_b32 s{S_TMP}, s{S_HG}, 2\ns_add_u32 s{S_TMP}, s{S_TMP}, s{S_WAVE}\ns_mul_i32 s{S_TMP}, s{S_TMP}, {8*PART_REC}")
    a(f"s_add_u32 s{S_TMP}, s{S_TMP}, s{S_PH}\ns_add_u32 s{S_TMP}, s{S_TMP}, {WS_PART}")
    def loads():
        for u in range(4):
            a(f"buffer_load_dwordx4 {vr(O+4*u,4)}, v{V_PO}, {srd(SRD_WS)}, s{S_TMP} offen offset:{u*PART_REC} sc1")
        for u in range(4):
            a(f"buffer_load_dwordx2 {vr(ML+2*u,2)}, v{V_PML}, {srd(SRD_WS)}, s{S_TMP} offen offset:{u*PART_REC} sc1")
    poll(a, loads, [f"v{O+k}" for k in range(24)], [f"v{t}", f"v{t+1}"])
    Prof.mark(a, 9, "v127", S_T, 8)
    a(f"v_max3_f32 v{M}, v{ML}, v{ML+2}, v{ML+4}\nv_max_f32 v{M}, v{M}, v{ML+6}")
    a(f"v_mov_b32 v{t}, v{M}\nv_permlane32_swap_b32 v{M}, v{t}\nv_max_f32 v{M}, v{M}, v{t}")
    for u in range(4): a(f"v_sub_f32 v{E+u}, v{ML+2*u}, v{M}")
    for u in range(4): a(f"v_exp_f32 v{E+u}, v{E+u}")
    a(f"v_mul_f32 v{Lr}, v{E}, v{ML+1}")
    for k in range(4): a(f"v_mul_f32 v{O+k}, v{E}, v{O+k}")
    for u in range(1, 4):
        a(f"v_fmac_f32 v{Lr}, v{E+u}, v{ML+2*u+1}")
        for k in range(4): a(f"v_fmac_f32 v{O+k}, v{E+u}, v{O+4*u+k}")
    a(f"v_mov_b32 v{t}, v{Lr}")
    a(f"v_permlane32_swap_b32 v{O}, v{O+2}")
    a(f"v_permlane32_swap_b32 v{Lr}, v{t}")
    a(f"v_permlane32_swap_b32 v{O+1}, v{O+3}")
    a(f"v_add_f32 v{Lr}, v{Lr}, v{t}\nv_add_f32 v{O}, v{O}, v{O+2}\nv_rcp_f32 v{Lr}, v{Lr}\nv_add_f32 v{O+1}, v{O+1}, v{O+3}")
    a(f"v_mul_f32 v{O}, v{O}, v{Lr}\nv_mul_f32 v{O+1}, v{O+1}, v{Lr}")
    a(f"v_cvt_pk_bf16_f32 v{O}, v{O}, v{O+1}")
    a(f"ds_write_b32 v{V_XBO}, v{O} offset:{XB_O}")
    a("s_waitcnt lgkmcnt(0)\ns_barrier")
    lq = Q(a, "lgkmcnt", 15)
    D = 128
    gemv(a, lq, lambda ct, s: ar(A_WO + (ct*16 + s)*4, 4), 2, 16, D, f"v{V_B}", XB_O)
    a(f"s_lshl_b32 s{S_TMP}, s{S_HG}, 11\ns_add_u32 s{S_TMP}, s{S_TMP}, s{S_PH}\ns_add_u32 s{S_TMP}, s{S_TMP}, {WS_Y}")
    a(f"s_lshl_b32 s{S_TMP2}, s{S_CG}, 2\ns_add_u32 s{S_TMP2}, s{S_TMP2}, s{S_WAVE}\ns_lshl_b32 s{S_TMP2}, s{S_TMP2}, 7\ns_add_u32 s{S_TMP}, s{S_TMP}, s{S_TMP2}")
    set_exec(a, EX_N0)
    store2(a, [f"buffer_store_dwordx4 {vr(D+4*ct,4)}, v{V_G16}, {srd(SRD_WS)}, s{S_TMP} offen offset:{64*ct}" for ct in range(2)])
    set_exec(a, EX_ALL)

def stage_W1(a):
    a.comment("---- stage W1: x1 = x + sum Y ; LN ; w1 ; gelu")
    T = BT
    a(f"s_add_u32 s{S_TMP}, s{S_PH}, {WS_Y}\ns_add_u32 s{S_TMP2}, s{S_TMP}, 4096\ns_add_u32 s{S_T3}, s{S_TMP}, 8192\ns_add_u32 s{S_T4}, s{S_TMP}, 12288")
    so = [S_TMP, S_TMP2, S_T3, S_T4]
    def loads():
        for u in range(8):
            a(f"buffer_load_dwordx2 {vr(T+2*u,2)}, v{V_T8}, {srd(SRD_WS)}, s{so[u//2]} offen offset:{(u%2)*2048} sc1")
    poll(a, loads, [f"v{T+k}" for k in range(16)], [f"v{T+16}", f"v{T+17}"])
    Prof.mark(a, 10, "v127", S_T, 8)
    for k in range(2):
        a(f"v_add_f32 v{T+k}, v{T+k}, v{T+2+k}\nv_add_f32 v{T+4+k}, v{T+4+k}, v{T+6+k}")
        a(f"v_add_f32 v{T+8+k}, v{T+8+k}, v{T+10+k}\nv_add_f32 v{T+12+k}, v{T+12+k}, v{T+14+k}")
    for k in range(2):
        a(f"v_add_f32 v{T+k}, v{T+k}, v{T+4+k}\nv_add_f32 v{T+8+k}, v{T+8+k}, v{T+12+k}")
    for k in range(2):
        a(f"v_add_f32 v{V_XC+k}, v{V_XC+k}, v{T+k}")
    for k in range(2):
        a(f"v_add_f32 v{V_XC+k}, v{V_XC+k}, v{T+8+k}")
    x_to_lds_stats(a, XB_1, STAT1, True)
    lq = Q(a, "lgkmcnt", 15)
    stat_reads(a, lq, STAT1)
    D = 56
    gemv(a, lq, lambda ct, s: vr(V_W1 + 4*s, 4), 1, 16, D, f"v{V_B}", XB_1, pre=lambda: lq.wait("st1"), shadow=stat_shadow())
    z = T; u = T + 4
    K1 = 2*math.sqrt(2/math.pi)*math.log2(math.e); K2 = K1*0.044715
    a(f"s_mov_b32 s{S_T3}, {f2h(-K1)}\ns_mov_b32 s{S_T4}, {f2h(-K2)}")
    for k in range(4): a(f"v_fma_f32 v{z+k}, -v{V_MEAN}, v{V_CS1+k}, v{D+k}")
    for k in range(4): a(f"v_fma_f32 v{z+k}, v{z+k}, v{V_RSTD}, v{V_B1+k}")
    for k in range(4): a(f"v_mul_f32 v{u+k}, v{z+k}, v{z+k}")
    a(f"v_mov_b32 v{u+4}, s{S_T3}")
    for k in range(4): a(f"v_fma_f32 v{u+k}, v{u+k}, s{S_T4}, v{u+4}")
    for k in range(4): a(f"v_mul_f32 v{u+k}, v{u+k}, v{z+k}")
    for k in range(4): a(f"v_exp_f32 v{u+k}, v{u+k}")
    for k in range(4): a(f"v_add_f32 v{u+k}, 1.0, v{u+k}")
    for k in range(4): a(f"v_rcp_f32 v{u+k}, v{u+k}")
    for k in range(4): a(f"v_mul_f32 v{z+k}, v{z+k}, v{u+k}")
    a(f"v_cvt_pk_bf16_f32 v{z}, v{z}, v{z+1}\nv_cvt_pk_bf16_f32 v{z+1}, v{z+2}, v{z+3}")
    Ls = a.newlabel("Lnoh")
    a(f"s_cmp_ge_u32 s{S_C}, 28\ns_cbranch_scc1 {Ls}")
    a(f"s_lshl_b32 s{S_TMP}, s{S_C}, 2\ns_add_u32 s{S_TMP}, s{S_TMP}, s{S_WAVE}\ns_lshl_b32 s{S_TMP}, s{S_TMP}, 5")
    a(f"s_add_u32 s{S_TMP}, s{S_TMP}, s{S_PH}\ns_add_u32 s{S_TMP}, s{S_TMP}, {WS_H}")
    set_exec(a, EX_N0)
    store2(a, [f"buffer_store_dwordx2 {vr(z,2)}, v{V_G8}, {srd(SRD_WS)}, s{S_TMP} offen"])
    set_exec(a, EX_ALL)
    a.label(Ls)

def stage_W2(a):
    a.comment("---- stage W2: x2 = x1 + h @ w2 + b2 (16 columns per WG)")
    T = BT
    a(f"s_mul_i32 s{S_TMP}, s{S_WAVE}, 896\ns_add_u32 s{S_TMP}, s{S_TMP}, s{S_PH}\ns_add_u32 s{S_TMP}, s{S_TMP}, {WS_H}")
    set_exec(a, (1 << 56) - 1)
    def loads():
        a(f"buffer_load_dwordx4 {vr(T,4)}, v{V_L16}, {srd(SRD_WS)}, s{S_TMP} offen sc1")
    poll(a, loads, [f"v{T+k}" for k in range(4)], [f"v{T+4}", f"v{T+5}"])
    Prof.mark(a, 11, "v127", S_T, 8)
    a(f"ds_write_b128 v{V_HBW}, {vr(T,4)}")
    set_exec(a, EX_ALL)
    a("s_waitcnt lgkmcnt(0)")
    lq = Q(a, "lgkmcnt", 15)
    D = 128
    gemv(a, lq, lambda ct, s: vr(V_W2 + 4*s, 4), 1, 14, D, f"v{V_HBR}", 0)
    set_exec(a, EX_N0)
    a(f"ds_write_b128 v{V_RDW}, {vr(D,4)}")
    set_exec(a, EX_ALL)
    a("s_waitcnt lgkmcnt(0)\ns_barrier")
    for w in range(4):
        a(f"ds_read_b32 v{T+w}, v{V_RDR} offset:{64*w}")
    a(f"s_lshl_b32 s{S_TMP}, s{S_C}, 6\nv_add_u32 v{T+5}, s{S_TMP}, v{V_RDR}")
    a(f"v_add_u32 v{T+5}, {(X1F - RED) & 0xffffffff if X1F < RED else X1F - RED}, v{T+5}")
    a(f"ds_read_b32 v{T+4}, v{T+5}")
    a("s_waitcnt lgkmcnt(0)")
    a(f"v_add_f32 v{T}, v{T}, v{T+1}\nv_add_f32 v{T+2}, v{T+2}, v{T+3}\nv_add_f32 v{T+4}, v{T+4}, v{V_B2}")
    a(f"v_add_f32 v{T}, v{T}, v{T+2}\nv_add_f32 v{T}, v{T}, v{T+4}")

def stage_Q_core(a, s_qph, xb=XB_Q, stat=STATQ):
    a.comment("---- stage Q core")
    x_to_lds_stats(a, xb, stat, False)
    lq = Q(a, "lgkmcnt", 15)
    stat_reads(a, lq, stat)
    D = 52
    gemv(a, lq, lambda ct, s: ar(A_WQ + (ct*16 + s)*4, 4), 2, 16, D, f"v{V_B}", xb, pre=lambda: lq.wait("st1"), shadow=stat_shadow())
    z = BT
    a(f"v_mul_f32 v{V_RSTD}, {f2h(QSCALE)}, v{V_RSTD}")
    for k in range(8): a(f"v_fma_f32 v{z+k}, -v{V_MEAN}, v{V_CSQ+k}, v{D+k}")
    for k in range(8): a(f"v_mul_f32 v{z+k}, v{z+k}, v{V_RSTD}")
    for k in range(4): a(f"v_cvt_pk_bf16_f32 v{z+k}, v{z+2*k}, v{z+2*k+1}")
    a(f"s_lshl_b32 s{S_TMP}, s{S_C}, 8\ns_lshl_b32 s{S_TMP2}, s{S_WAVE}, 6\ns_add_u32 s{S_TMP}, s{S_TMP}, s{S_TMP2}")
    a(f"s_add_u32 s{S_TMP}, s{S_TMP}, {s_qph}")
    a(f"s_lshl_b32 s{S_T3}, s{S_B}, 8\ns_add_u32 s{S_T3}, s{S_T3}, s{S_TMP2}\ns_add_u32 s{S_T3}, s{S_T3}, {SM+QB}")
    a(f"v_add_u32 v{z+4}, s{S_T3}, v{V_G8}")
    set_exec(a, EX_N0)
    for ct in range(2):
        a(f"buffer_store_dwordx2 {vr(z+2*ct,2)}, v{V_G8}, {srd(SRD_WS)}, s{S_TMP} offen offset:{WS_Q + 32*ct} sc1")
    for ct in range(2):
        a(f"ds_write_b64 v{z+4}, {vr(z+2*ct,2)} offset:{32*ct}")
    set_exec(a, EX_ALL)

def leftover_pass(a, s_ph):
    a.comment("---- leftover block pass")
    R = CR
    a("s_waitcnt lgkmcnt(0)\ns_barrier")
    a(f"s_lshl_b32 s{S_TMP}, s{S_B}, 8\nv_add_u32 v{R.T}, s{S_TMP}, v{V_B}")
    for s in range(4):
        a(f"ds_read_b128 {vr(R.q+4*s,4)}, v{R.T} offset:{QB + 64*s}")
    a(f"s_xor_b32 s{S_TMP2}, s{S_B}, 1\ns_lshl_b32 s{S_TMP2}, s{S_TMP2}, 14\ns_add_u32 s{S_TMP2}, s{S_TMP2}, s{S_REG}")
    emit_lds_addrs(a, R, f"v{V_LANE}", f"s{S_TMP2}", f"v{R.t}", f"v{R.t+1}")
    emit_pass_init(a, R)
    a("s_waitcnt lgkmcnt(0)")
    emit_block(a, R, (0, 4096), (8192, 12288))
    a(f"s_mul_i32 s{S_TMP}, s{S_WAVE}, {CSTR}\ns_add_u32 s{S_TMP}, s{S_TMP}, {SM+CCOMB}")
    emit_partial_write(a, R, f"v{V_LANE}", f"s{S_TMP}", R.T)
    a("s_waitcnt lgkmcnt(0)\ns_barrier")
    Ls = a.newlabel("Lnp")
    a(f"s_cmp_lg_u32 s{S_WAVE}, 0\ns_cbranch_scc1 {Ls}")
    a(f"s_lshl_b32 s{S_TMP2}, s{S_C}, 3\ns_add_u32 s{S_TMP2}, s{S_TMP2}, 7\ns_mul_i32 s{S_TMP2}, s{S_TMP2}, {PART_REC}")
    a(f"s_add_u32 s{S_TMP2}, s{S_TMP2}, {s_ph}\ns_add_u32 s{S_TMP2}, s{S_TMP2}, {WS_PART}")
    a(f"s_mov_b32 s{S_TMP}, {SM+CCOMB}")
    emit_combine_publish(a, f"v{V_LANE}", f"s{S_TMP}", CSTR, R.T, f"s{S_TMP2}")
    a.label(Ls)

def load_x_input(a):
    a(f"s_lshl_b32 s{S_TMP}, s{S_B}, 10")
    a(f"v_lshlrev_b32 v{TMP}, 2, v{V_TID}")
    a(f"buffer_load_dword v{TMP+1}, v{TMP}, {srd(SRD_X)}, s{S_TMP} offen")
    a("s_waitcnt vmcnt(0)")
    a(f"v_lshlrev_b32 v{V_XC}, 16, v{TMP+1}\nv_and_b32 v{V_XC+1}, 0xffff0000, v{TMP+1}")

def save_x(a):
    Lb = a.newlabel("Lsx"); Le = a.newlabel("Lsxe")
    a(f"s_cmp_eq_u32 s{S_B}, 0\ns_cbranch_scc0 {Lb}")
    a(f"v_mov_b32 v{V_XR}, v{V_XC}\nv_mov_b32 v{V_XR+1}, v{V_XC+1}\ns_branch {Le}")
    a.label(Lb)
    a(f"v_mov_b32 v{V_XR+2}, v{V_XC}\nv_mov_b32 v{V_XR+3}, v{V_XC+1}")
    a.label(Le)
def restore_x(a):
    Lb = a.newlabel("Lrx"); Le = a.newlabel("Lrxe")
    a(f"s_cmp_eq_u32 s{S_B}, 0\ns_cbranch_scc0 {Lb}")
    a(f"v_mov_b32 v{V_XC}, v{V_XR}\nv_mov_b32 v{V_XC+1}, v{V_XR+1}\ns_branch {Le}")
    a.label(Lb)
    a(f"v_mov_b32 v{V_XC}, v{V_XR+2}\nv_mov_b32 v{V_XC+1}, v{V_XR+3}")
    a.label(Le)

def wait_arrival(a, vt):
    L = a.newlabel("Larr"); D = a.newlabel("Larrd")
    a(f"v_mov_b32 {vt[1]}, 0")
    a.label(L)
    a(f"buffer_load_dword {vt[0]}, {vt[1]}, {srd(SRD_DBG)}, 0 offen sc1")
    a(f"s_waitcnt vmcnt(0)\nv_and_b32 {vt[2]}, 63, {vt[0]}\nv_cmp_ne_u32 vcc, 32, {vt[2]}")
    a(f"s_cbranch_vccz {D}")
    a(f"s_sub_u32 s{S_BUD}, s{S_BUD}, 1\ns_cbranch_scc0 {L}\ns_mov_b32 s{S_BUD}, 0")
    a.label(D)

def gen_chain(a, order):
    a.label("L_chain")
    a(f"s_lshr_b32 s{S_C}, s{S_WG}, 3")
    a(f"s_min_u32 s{S_CC}, s{S_C}, 27")
    a(f"s_lshr_b32 s{S_HG}, s{S_C}, 2\ns_and_b32 s{S_CG}, s{S_C}, 3")
    a(f"s_mul_i32 s{S_REG}, s{S_WAVE}, {WREG}")
    a(f"v_and_b32 v{V_LANE}, 63, v{V_TID}")
    t0, t1 = f"v{TMP}", f"v{TMP+1}"
    vq = Q(a, "vmcnt", 63)
    a(f"v_lshlrev_b32 v{TMP+6}, 2, v{V_TID}")
    for b in (1, 0):
        a(f"buffer_load_dword v{V_XR+2*b+1}, v{TMP+6}, {srd(SRD_X)}, 0 offen offset:{1024*b}"); vq.issue("x")
    a(f"s_lshl_b32 s{S_TMP}, s{S_C}, 2\ns_add_u32 s{S_TMP}, s{S_TMP}, s{S_WAVE}\ns_mul_i32 s{S_TMP}, s{S_TMP}, 6144")
    a(f"v_lshlrev_b32 v{V_L16}, 4, v{V_LANE}")
    for k in range(4): a(f"v_mov_b32 v{TMP+4+k}, -1")
    for i in range(6):
        if i == 4: a(f"s_add_u32 s{S_TMP}, s{S_TMP}, 4096")
        a(f"buffer_store_dwordx4 {vr(TMP+4,4)}, v{V_L16}, {srd(SRD_WS)}, s{S_TMP} offen offset:{(i%4)*1024} sc1"); vq.issue("clr")
    S_WQO = S_QPH; S_WOO = S_PH
    a(f"s_lshl_b32 s{S_WQO}, s{S_C}, 8\ns_lshl_b32 s{S_TMP}, s{S_WAVE}, 6\ns_add_u32 s{S_WQO}, s{S_WQO}, s{S_TMP}")
    for h in range(2): issue_seg64(a, vq, ("wq", h), SRD_WQ, 8192, f"s{S_WQO}", h)
    a(f"s_lshl_b32 s{S_WOO}, s{S_HG}, 19")
    a(f"s_lshl_b32 s{S_TMP}, s{S_CG}, 2\ns_add_u32 s{S_TMP}, s{S_TMP}, s{S_WAVE}\ns_lshl_b32 s{S_TMP}, s{S_TMP}, 6\ns_add_u32 s{S_WOO}, s{S_WOO}, s{S_TMP}")
    a(f"v_lshrrev_b32 {t1}, 4, v{V_LANE}")
    a(f"v_lshlrev_b32 v{V_G16}, 4, {t1}\nv_lshlrev_b32 v{V_G8}, 3, {t1}")
    a(f"v_add_u32 v{V_B}, {SM}, v{V_G16}")
    a(f"v_lshlrev_b32 v{V_T4}, 2, v{V_TID}\nv_add_u32 v{V_T4}, {SM}, v{V_T4}")
    a(f"v_lshlrev_b32 v{V_T8}, 3, v{V_TID}\nv_add_u32 v{V_X1W}, {SM}, v{V_T8}")
    a(f"v_lshrrev_b32 {t1}, 5, v{V_LANE}\nv_mul_u32_u24 {t1}, {4*PART_REC}, {t1}")
    a(f"v_add_u32 v{V_PML}, 512, {t1}")
    a(f"v_and_b32 v{V_PO}, 31, v{V_LANE}\nv_lshlrev_b32 v{V_PO}, 4, v{V_PO}\nv_add_u32 v{V_PO}, v{V_PO}, {t1}")
    a(f"v_and_b32 v{V_XBO}, 31, v{V_LANE}\nv_lshlrev_b32 v{V_XBO}, 1, v{V_XBO}\nv_lshrrev_b32 {t1}, 5, v{V_LANE}\nv_add_u32 v{V_XBO}, v{V_XBO}, {t1}")
    a(f"v_lshlrev_b32 v{V_XBO}, 2, v{V_XBO}\ns_lshl_b32 s{S_TMP}, s{S_WAVE}, 8\ns_add_u32 s{S_TMP}, s{S_TMP}, {SM}\nv_add_u32 v{V_XBO}, s{S_TMP}, v{V_XBO}")
    a(f"s_lshl_b32 s{S_TMP}, s{S_WAVE}, 10\ns_add_u32 s{S_TMP}, s{S_TMP}, {SM+HB}")
    a(f"v_add_u32 v{V_HBW}, s{S_TMP}, v{V_L16}\nv_add_u32 v{V_HBR}, s{S_TMP}, v{V_G16}")
    a(f"s_lshl_b32 s{S_TMP}, s{S_WAVE}, 6\ns_add_u32 s{S_TMP}, s{S_TMP}, {SM+RED}\nv_add_u32 v{V_RDW}, s{S_TMP}, v{V_G16}")
    a(f"v_and_b32 v{V_L4}, 15, v{V_LANE}\nv_lshlrev_b32 v{V_L4}, 2, v{V_L4}\nv_add_u32 v{V_RDR}, {SM+RED}, v{V_L4}")
    emit_masks(a)
    vq.wait("clr")
    a("s_barrier")
    La = a.newlabel("Lnoarr")
    a(f"s_cmp_lg_u32 s{S_WAVE}, 0\ns_cbranch_scc1 {La}")
    a(f"s_getreg_b32 s{S_TMP}, hwreg(HW_REG_XCC_ID)\ns_and_b32 s{S_TMP}, s{S_TMP}, 15")
    a(f"s_mul_i32 s{S_TMP2}, s{S_TMP}, s{S_TMP}\ns_lshl_b32 s{S_TMP2}, s{S_TMP2}, 15\ns_lshl_b32 s{S_TMP}, s{S_TMP}, 6")
    a(f"s_add_u32 s{S_TMP}, s{S_TMP}, s{S_TMP2}\ns_add_u32 s{S_TMP}, s{S_TMP}, 1")
    a(f"v_mov_b32 v{TMP+4}, s{S_TMP}\nv_mov_b32 v{TMP+5}, 0")
    set_exec(a, 1)
    a(f"buffer_atomic_add v{TMP+4}, v{TMP+5}, {srd(SRD_DBG)}, 0 offen sc1")
    set_exec(a, EX_ALL)
    a.label(La)
    for b in (1, 0):
        a(f"v_lshlrev_b32 v{V_XR+2*b}, 16, v{V_XR+2*b+1}\nv_and_b32 v{V_XR+2*b+1}, 0xffff0000, v{V_XR+2*b+1}")
    Prof.mark(a, 1, "v127")
    V_ARR = 62
    vq.wait(("wq", 0)); read_seg64(a, A_WQ, 0)
    a(f"buffer_load_dword v{V_ARR}, off, {srd(SRD_DBG)}, 0 sc1"); vq.issue("arr")
    issue_seg64(a, vq, ("wo", 0), SRD_WO, 1024, f"s{S_WOO}", 0)
    vq.wait(("wq", 1)); read_seg64(a, A_WQ, 1)
    issue_seg64(a, vq, ("wo", 1), SRD_WO, 1024, f"s{S_WOO}", 1)
    Prof.mark(a, 2, "v127")
    colsum(a, lambda ct, s: ar(A_WQ + (ct*16 + s)*4, 4), 2, 16, V_CSQ)
    vq.wait("arr")
    Lok = a.newlabel("Larrok")
    a(f"v_and_b32 v{TMP+6}, 63, v{V_ARR}\nv_cmp_ne_u32 vcc, 32, v{TMP+6}\ns_cbranch_vccz {Lok}")
    wait_arrival(a, [f"v{V_ARR}", f"v{TMP+5}", f"v{TMP+6}"])
    a.label(Lok)
    a(f"v_readfirstlane_b32 s{S_TMP}, v{V_ARR}")
    a(f"s_bfe_u32 s{S_TMP2}, s{S_TMP}, {(9 << 16) | 6}\ns_lshr_b32 s{S_TMP}, s{S_TMP}, 15\ns_lshl_b32 s{S_TMP}, s{S_TMP}, 5")
    a(f"s_mul_i32 s{S_TMP2}, s{S_TMP2}, s{S_TMP2}\ns_cmp_eq_u32 s{S_TMP}, s{S_TMP2}\ns_cselect_b32 s{S_FAST}, 1, 0")
    for b in (1, 0):
        a(f"s_mov_b32 s{S_B}, {b}\ns_mov_b32 s{S_DRY}, {b*PH}")
        a(f"v_mov_b32 v{V_XC}, v{V_XR+2*b}\nv_mov_b32 v{V_XC+1}, v{V_XR+2*b+1}")
        stage_Q_core(a, f"s{S_DRY}", *((XB_Q, STATQ) if b else (XB_1, STAT1)))
        vq.issue("qst"); vq.issue("qst")
    Prof.mark(a, 3, "v127")
    vq.wait(("wo", 0)); read_seg64(a, A_WO, 0)
    issue_w1(a, vq)
    vq.wait(("wo", 1)); read_seg64(a, A_WO, 1)
    issue_w2(a, vq)
    Prof.mark(a, 4, "v127")
    a(f"s_lshl_b32 s{S_TMP}, s{S_CC}, 2\ns_add_u32 s{S_TMP}, s{S_TMP}, s{S_WAVE}\ns_lshl_b32 s{S_TMP}, s{S_TMP}, 5")
    a(f"buffer_load_dwordx2 {vr(60,2)}, v{V_G8}, {srd(SRD_B1)}, s{S_TMP} offen"); vq.issue("b")
    a(f"s_lshl_b32 s{S_TMP2}, s{S_C}, 5\nv_lshrrev_b32 v{TMP+2}, 1, v{V_L4}")
    a(f"buffer_load_ushort v{V_B2}, v{TMP+2}, {srd(SRD_B2)}, s{S_TMP2} offen"); vq.issue("b")
    emit_dma_voff(a, f"v{V_DE}", f"v{V_DO}", f"v{V_LANE}", f"v{TMP+3}", f"v{TMP+4}")
    def issue_kv(b):
        a(f"s_add_u32 s{S_TMP}, s{S_WAVE}, 252\ns_lshl_b32 s{S_TMP}, s{S_TMP}, 13\ns_lshl_b32 s{S_TMP2}, s{S_C}, 21\ns_add_u32 s{S_TMP}, s{S_TMP}, s{S_TMP2}")
        for (i, (sn, add)) in enumerate(((SRD_K, 0), (SRD_K, 4096), (SRD_V, 0), (SRD_V, 4096))):
            a(f"s_add_u32 s{S_T3}, s{S_TMP}, {b*(64<<20) + add}\ns_add_u32 s{S_T4}, s{S_REG}, {((1-b)*4+i)*4096}")
            dma_tile(a, sn, f"s{S_T3}", f"s{S_T4}", f"v{V_DE}", f"v{V_DO}")
            for _ in range(4): vq.issue(("kv", b))
    vq.wait("w1"); read_w12(a, V_W1, 16, 0)
    issue_kv(1)
    colsum(a, lambda ct, s: vr(V_W1 + 4*s, 4), 1, 16, V_CS1)
    vq.wait("w2"); read_w12(a, V_W2, 14, 16384)
    issue_kv(0)
    vq.wait("b")
    a(f"v_lshlrev_b32 v{V_B1}, 16, v60\nv_and_b32 v{V_B1+1}, 0xffff0000, v60\nv_lshlrev_b32 v{V_B1+2}, 16, v61\nv_and_b32 v{V_B1+3}, 0xffff0000, v61")
    a(f"v_lshlrev_b32 v{V_B2}, 16, v{V_B2}")
    for b in (1, 0):
        vq.wait(("kv", b))
        a(f"s_mov_b32 s{S_B}, {b}\ns_mov_b32 s{S_QPH}, {b*PH}")
        leftover_pass(a, f"s{S_QPH}")
    Prof.mark(a, 5, "v127")
    seq = 0
    for t, p in enumerate(order): seq |= p << (4*t)
    a(f"s_mov_b32 s{S_T}, 0")
    a.label("L_cloop")
    a(f"s_lshl_b32 s{S_TMP}, s{S_T}, 2\ns_lshr_b32 s{S_PID}, {hex(seq)}, s{S_TMP}\ns_and_b32 s{S_PID}, s{S_PID}, 3")
    a(f"s_and_b32 s{S_B}, s{S_PID}, 1\ns_lshr_b32 s{S_LAYER}, s{S_PID}, 1\ns_mul_i32 s{S_PH}, s{S_PID}, {PH}")
    restore_x(a)
    Prof.mark(a, 8, "v127", S_T, 8)
    stage_O(a)
    stage_W1(a)
    stage_W2(a)
    T = BT
    Lout = a.newlabel("Lout"); Lnext = a.newlabel("Lnext")
    a(f"s_cmp_eq_u32 s{S_LAYER}, 1\ns_cbranch_scc1 {Lout}")
    Lw = a.newlabel("Lx2")
    a(f"s_cmp_lg_u32 s{S_WAVE}, 0\ns_cbranch_scc1 {Lw}")
    a(f"s_lshl_b32 s{S_TMP}, s{S_C}, 6\ns_add_u32 s{S_TMP}, s{S_TMP}, s{S_PH}\ns_add_u32 s{S_TMP}, s{S_TMP}, {WS_X2}")
    set_exec(a, 0xffff)
    store2(a, [f"buffer_store_dword v{T}, v{V_L4}, {srd(SRD_WS)}, s{S_TMP} offen"])
    set_exec(a, EX_ALL)
    a.label(Lw)
    a(f"s_add_u32 s{S_TMP}, s{S_PH}, {WS_X2}")
    poll(a, lambda: a(f"buffer_load_dwordx2 {vr(V_XC,2)}, v{V_T8}, {srd(SRD_WS)}, s{S_TMP} offen sc1"),
         [f"v{V_XC}", f"v{V_XC+1}"], [f"v{T}", f"v{T+1}"])
    Prof.mark(a, 12, "v127", S_T, 8)
    save_x(a)
    a(f"s_add_u32 s{S_QPH}, s{S_PH}, {2*PH}")
    stage_Q_core(a, f"s{S_QPH}")
    Prof.mark(a, 13, "v127", S_T, 8)
    leftover_pass(a, f"s{S_QPH}")
    a(f"s_branch {Lnext}")
    a.label(Lout)
    Lo = a.newlabel("Lo2")
    a(f"s_cmp_lg_u32 s{S_WAVE}, 0\ns_cbranch_scc1 {Lo}")
    a(f"v_cvt_pk_bf16_f32 v{T}, v{T}, v{T}")
    a(f"s_lshl_b32 s{S_TMP}, s{S_B}, 10\ns_lshl_b32 s{S_TMP2}, s{S_C}, 5\ns_add_u32 s{S_TMP}, s{S_TMP}, s{S_TMP2}")
    a(f"v_lshrrev_b32 v{T+1}, 1, v{V_L4}")
    set_exec(a, 0xffff)
    a(f"buffer_store_short v{T}, v{T+1}, {srd(SRD_OUT)}, s{S_TMP} offen")
    set_exec(a, EX_ALL)
    a.label(Lo)
    a.label(Lnext)
    Prof.mark(a, 14, "v127", S_T, 8)
    a(f"s_add_u32 s{S_T}, s{S_T}, 1\ns_cmp_lt_u32 s{S_T}, 4\ns_cbranch_scc1 L_cloop")
    a("s_waitcnt vmcnt(0)\ns_endpgm")
```
